```python
import torch

def _softmax(x, axis=-1):
    return torch.softmax(x, dim=axis)
def _gelu(x):
    return torch.nn.functional.gelu(x, approximate="tanh")
def _silu(x):
    return torch.nn.functional.silu(x)
def _sigmoid(x):
    return torch.sigmoid(x)
def _layernorm(x, axis=-1, eps=1e-5):
    m = x.mean(dim=axis, keepdim=True)
    v = x.var(dim=axis, keepdim=True, unbiased=False)
    return (x - m) / torch.sqrt(v + eps)
def _scatter_add(tgt, idx, src, axis=0):
    return tgt.clone().index_add_(axis, idx, src)
def _segment_sum(src, seg, n):
    out = torch.zeros((n,) + src.shape[1:], dtype=src.dtype)
    return out.index_add_(0, seg, src)
def _pad(x, pw):
    flat = tuple(v for pair in reversed(pw) for v in pair)
    return torch.nn.functional.pad(x, flat)

kernel_name = 'concat_heads__sliding_local_dilated__spectral_fnet__prompt'

def setup_inputs():

    _w = (lambda a: (lambda t: t.to(torch.bfloat16) if t.is_floating_point() else t)(torch.as_tensor(a)))
    def _A_setup():
        B, S, D = 1, 2048, 1024
        return {
            "x": _w((lambda *s: torch.randn(*s, dtype=torch.bfloat16) * 0.2)(B, S, D)),
            "wqkv": _w((lambda *s: torch.randn(*s, dtype=torch.bfloat16) * 0.8)(D, 3 * D)),
            "wo": _w((lambda *s: torch.randn(*s, dtype=torch.bfloat16) * 0.2)(D, D)),
        }
    _A_in = _A_setup()

    def _B_setup():
        B, S, D = 1, 2048, 1024
        ns = torch.arange(S)[:, None] * torch.arange(S)[None, :]
        nd = torch.arange(D)[:, None] * torch.arange(D)[None, :]
        Ws_re = torch.cos(-2.0 * torch.pi * ns / S).to(float)
        Ws_im = torch.sin(-2.0 * torch.pi * ns / S).to(float)
        Wd_re = torch.cos(-2.0 * torch.pi * nd / D).to(float)
        Wd_im = torch.sin(-2.0 * torch.pi * nd / D).to(float)
        return {
            "x": _w((lambda *s: torch.randn(*s, dtype=torch.bfloat16) * 0.05)(B, S, D)),
            "dft_seq_re": _w(Ws_re),
            "dft_seq_im": _w(Ws_im),
            "dft_hid_re": _w(Wd_re),
            "dft_hid_im": _w(Wd_im),
        }
    _B_in = _B_setup()

    return {
        "A_x": _A_in["x"],
        "A_wqkv": _A_in["wqkv"],
        "A_wo": _A_in["wo"],
        "B_x": _B_in["x"],
        "B_dft_seq_re": _B_in["dft_seq_re"],
        "B_dft_seq_im": _B_in["dft_seq_im"],
        "B_dft_hid_re": _B_in["dft_hid_re"],
        "B_dft_hid_im": _B_in["dft_hid_im"],
    }

def reference(A_x, A_wqkv, A_wo, B_x, B_dft_seq_re, B_dft_seq_im, B_dft_hid_re, B_dft_hid_im):
    def _A_ref(x, wqkv, wo):
        B, S, D = x.shape
        H = 32; Dh = D // H
        W, dil = 8, 2
        qkv = (lambda x, *d: x.permute(*d))((x @ wqkv).reshape(B, S, 3, H, Dh), 2, 0, 3, 1, 4)
        q, k, v = qkv[0], qkv[1], qkv[2]
        scale = Dh ** -0.5
        pos = torch.arange(S)
        off = torch.arange(W) * dil
        idx = pos[:, None] - off[None, :]
        mask = idx >= 0
        idx_c = torch.where(mask, idx, 0).reshape(-1)
        kg = k[:, :, idx_c, :].reshape(B, H, S, W, Dh)
        vg = v[:, :, idx_c, :].reshape(B, H, S, W, Dh)
        logits = torch.einsum("bhsd,bhswd->bhsw", q, kg) * scale
        logits = torch.where(mask[None, None, :, :], logits, -1e9)
        attn = _softmax(logits, axis=-1)
        o = torch.einsum("bhsw,bhswd->bhsd", attn, vg)
        return (lambda x, *d: x.permute(*d))(o, 0, 2, 1, 3).reshape(B, S, D) @ wo

    def _B_ref(x, dft_seq_re, dft_seq_im, dft_hid_re, dft_hid_im):
        a = torch.einsum("bsd,ed->bse", x, dft_hid_re)
        b = torch.einsum("bsd,ed->bse", x, dft_hid_im)
        y = torch.einsum("ts,bse->bte", dft_seq_re, a) - torch.einsum("ts,bse->bte", dft_seq_im, b)
        return y

    a = _A_ref(A_x, A_wqkv, A_wo)
    b = _B_ref(B_x, B_dft_seq_re, B_dft_seq_im, B_dft_hid_re, B_dft_hid_im)
    return torch.concatenate([a, b], axis=-1)
```

```python
KNAME = "concat_heads__sliding_local_dilated__spectral_fnet__prompt_kernel"

class Asm:
    def __init__(self):
        self.lines = []
        self.uid = 0
    def __call__(self, s=""):
        for ln in s.split("\n"):
            self.lines.append("    " + ln.strip() if ln.strip() and not ln.strip().endswith(":") else ln.strip())
    def label(self, name):
        self.lines.append(name + ":")
    def newlabel(self, base):
        self.uid += 1
        return f"L_{base}_{self.uid}"
    def text(self):
        return "\n".join(self.lines) + "\n"

def vr(base, n=1):
    return f"v{base}" if n == 1 else f"v[{base}:{base + n - 1}]"
def sr(base, n=1):
    return f"s{base}" if n == 1 else f"s[{base}:{base + n - 1}]"

def wrap(body, grid, block, lds, vgpr=256, sgpr=102, header="", kname=KNAME):
    return f"""{header}; @launch grid=({grid},1,1) block=({block},1,1) lds={lds}
.amdgcn_target "amdgcn-amd-amdhsa--gfx950"
.text
.globl {kname}
.p2align 8
.type {kname},@function
{kname}:
{body}
.section .rodata,"a"
.p2align 6
.amdhsa_kernel {kname}
  .amdhsa_next_free_vgpr {vgpr}
  .amdhsa_next_free_sgpr {sgpr}
  .amdhsa_accum_offset {min(256, (vgpr + 3) // 4 * 4)}
  .amdhsa_group_segment_fixed_size 0
  .amdhsa_kernarg_size 88
  .amdhsa_user_sgpr_count 2
  .amdhsa_user_sgpr_kernarg_segment_ptr 1
  .amdhsa_system_sgpr_workgroup_id_x 1
.end_amdhsa_kernel
"""
```

```python
import re
TRANS = ("v_exp_f32", "v_log_f32", "v_rcp_f32", "v_rsq_f32", "v_sqrt_f32", "v_sin_f32", "v_cos_f32")
def regs(tok):
    tok = tok.strip()
    tok = re.sub(r"^-|^abs\(|\)$|^\|", "", tok).rstrip("|")
    m = re.fullmatch(r"([vsa])(\d+)", tok)
    if m: return [(m.group(1), int(m.group(2)))]
    m = re.fullmatch(r"([vsa])\[(\d+):(\d+)\]", tok)
    if m: return [(m.group(1), i) for i in range(int(m.group(2)), int(m.group(3)) + 1)]
    if tok == "vcc": return [("s", "vcc")]
    if tok == "exec": return [("s", "exec")]
    if tok == "m0": return [("s", "m0")]
    return []
def parse(line):
    t = line.split(";")[0].strip()
    if not t or t.endswith(":") or t.startswith("."): return None
    p = t.split(None, 1); op = p[0]
    ops = [x.strip() for x in p[1].split(",")] if len(p) > 1 else []
    if ops: ops[-1:] = ops[-1].split()
    R = [regs(o) for o in ops]
    d = dict(op=op, w=[], r=[], kind="other", a=[], c=[], data=[], text=t)
    flat = lambda L: [x for l in L for x in l]
    if op.startswith("v_mfma"):
        d.update(kind="mfma", passes=8 if "32x32" in op else 4, w=R[0], a=R[1] + R[2], c=R[3], r=R[1] + R[2] + R[3])
    elif op.startswith("v_permlane"):
        d.update(kind="permlane", w=R[0] + R[1], r=R[0] + R[1])
    elif op.startswith(("v_readfirstlane", "v_readlane")):
        d.update(kind="readlane", w=R[0], r=flat(R[1:]))
    elif op.startswith("v_cmp"):
        d.update(kind="valu", w=R[0], r=flat(R[1:]))
    elif op.startswith("v_"):
        w = R[0]; r = flat(R[1:])
        if "_co_" in op: w = R[0] + R[1]; r = flat(R[2:])
        if op.startswith(("v_fmac", "v_mac")): r = r + R[0]
        d.update(kind="trans" if op.replace("_e32", "").replace("_e64", "") in TRANS else "valu", w=w, r=r, dpp=("row_" in t or "quad_perm" in t))
    elif op.startswith(("buffer_load", "global_load")):
        if " lds" in t: d.update(kind="vmem", r=flat(R) + [("s", "m0")], dma=True)
        else: d.update(kind="vmem", w=R[0], r=flat(R[1:]))
    elif op.startswith("buffer_store") or op.startswith("buffer_atomic"):
        d.update(kind="vmem", r=flat(R), data=R[0] if "x4" in op or "x3" in op else [])
    elif op.startswith("global_store") or op.startswith("global_atomic"):
        d.update(kind="vmem", r=flat(R), data=R[1] if "x4" in op or "x3" in op else [])
    elif op.startswith(("ds_read", "ds_bpermute", "ds_permute", "ds_swizzle")):
        d.update(kind="ds", w=R[0], r=flat(R[1:]))
    elif op.startswith("ds_"):
        d.update(kind="ds", r=flat(R))
    elif op == "s_nop":
        d.update(kind="nop", n=int(ops[0], 0) + 1)
    elif op.startswith("s_"):
        if op.startswith(("s_cmp", "s_cbranch", "s_branch", "s_waitcnt", "s_barrier", "s_endpgm", "s_setprio", "s_sleep")):
            d.update(kind="salu", r=flat(R))
        else:
            w = R[0] if R else []
            if "saveexec" in op: w = w + [("s", "exec")]
            d.update(kind="salu", w=w, r=flat(R[1:]))
    return d
def need(p, c):
    pw = set(p["w"]); n = 0
    isv = lambda k: k in ("valu", "trans", "permlane", "readlane")
    vw = {x for x in pw if x[0] in "va"}; sw = {x for x in pw if x[0] == "s"}
    cr = set(c["r"]); cw = set(c["w"])
    if p["kind"] == "mfma":
        ps = p["passes"]
        if c["kind"] == "mfma":
            if pw & set(c["a"]): n = max(n, ps + 4)
            cc = set(c["c"])
            if pw & cc and not (p["w"] == c["c"] and p["passes"] == c["passes"]): n = max(n, ps + 2)
            if pw & cw and p["w"] != c["c"]: n = max(n, ps + 2)
        elif pw & (cr | cw): n = max(n, ps + 4)
        if isv(c["kind"]) and set(p["c"]) & cw: n = max(n, ps - 1)
    if isv(p["kind"]):
        if c["kind"] == "mfma" and vw & cr: n = max(n, 2)
        if c["kind"] == "permlane" and vw & cr: n = max(n, 2)
        if c["kind"] == "readlane" and vw & cr: n = max(n, 1)
        if c.get("dpp") and vw & cr: n = max(n, 2)
        if p["kind"] == "trans" and c["kind"] in ("valu", "permlane", "readlane", "trans") and vw & cr: n = max(n, 1)
        if sw and isv(c["kind"]) and sw & cr: n = max(n, 2)
        if sw and c["kind"] == "vmem" and sw & cr: n = max(n, 5)
        if sw and c["kind"] == "salu" and sw & cr: n = max(n, 1)
    if p["kind"] == "salu" and ("s", "m0") in pw and c.get("dma"): n = max(n, 1)
    if p["kind"] == "vmem" and p["data"] and set(p["data"]) & cw: n = max(n, 2)
    return n
def fix(text):
    out = []; hist = []; pos = 0; added = 0
    for line in text.split("\n"):
        d = parse(line)
        if d is None:
            out.append(line); continue
        req = 0
        for (q, p) in hist:
            gap = pos - q - 1
            req = max(req, need(p, d) - gap)
        if req > 0 and d["kind"] != "nop":
            out.append(f"    s_nop {req - 1}"); pos += req; added += 1
        out.append(line)
        if d["kind"] == "nop": pos += d["n"]
        else:
            hist.append((pos, d)); pos += 1
        hist = [(q, p) for (q, p) in hist if pos - q <= 24]
        if d["op"] in ("s_branch", "s_endpgm"): hist = []
    return "\n".join(out), added
```

```python
import sys, struct
from asmlib import *
from hazard import fix

SLOT = 43008; XB = 0; WB = 18432
LDS_B = 131072; LDS_C = 147456; LDS_TOTAL = 163840
WS_O = 0; WS_V = 4 << 20; WS_F = 8 << 20; WS_ST = 12 << 20
SPIN = 1 << 20

def f32(x):
    return "0x%08x" % struct.unpack("<I", struct.pack("<f", x))[0]

S_WAVE, S_XCD, S_LI, S_RB, S_CT, S_RB2, S_CT2, S_H0 = 3, 4, 5, 6, 7, 8, 9, 10
S_DBG = 12
R_X, R_W, R_WO, R_BX, R_OUT, R_WS = 16, 20, 24, 28, 32, 36
S_STAMP = 76

def srd(r): return f"s[{r}:{r+3}]"

def gen(stamps=False, mimic=True, prio=True):
    a = Asm()
    nstamp = [0]
    def stamp(i):
        if stamps: a(f"s_memrealtime s[{S_STAMP+2*i}:{S_STAMP+2*i+1}]")
    def dump_stamps(base, n, cond_reg, vt):
        if not stamps: return
        lab = a.newlabel("nost")
        a(f"s_waitcnt lgkmcnt(0)\ns_cmp_lg_u32 s{cond_reg}, 0\ns_cbranch_scc1 {lab}")
        a(f"s_lshl_b32 s40, s2, 8\ns_add_u32 s40, s40, {WS_ST + base}\nv_mov_b32 v{vt}, 0")
        for i in range(n):
            a(f"v_mov_b32 v{vt+1}, s{S_STAMP+2*i}\nbuffer_store_dword v{vt+1}, v{vt}, {srd(R_WS)}, s40 offen offset:{4*i}")
        a.label(lab)

    for r, off in ((R_X, 0), (R_W, 8), (R_BX, 24), (R_WS, 80), (R_WO, 16), (R_OUT, 64), (S_DBG, 72)):
        a(f"s_load_dwordx2 s[{r}:{r+1}], s[0:1], {off}")
    stamp(0)
    a("s_cmp_ge_u32 s2, 256\ns_cbranch_scc1 L_end")
    a(f"v_lshrrev_b32 v1, 6, v0\nv_and_b32 v2, 63, v0\ns_and_b32 s{S_XCD}, s2, 7\nv_readfirstlane_b32 s{S_WAVE}, v1\ns_lshr_b32 s{S_LI}, s2, 3")
    a(f"s_and_b32 s{S_RB}, s{S_XCD}, 1\ns_lshl_b32 s{S_RB}, s{S_RB}, 3\ns_and_b32 s40, s{S_LI}, 7\ns_add_u32 s{S_RB}, s{S_RB}, s40")
    a(f"s_lshr_b32 s{S_CT}, s{S_XCD}, 1\ns_lshl_b32 s{S_CT}, s{S_CT}, 2\ns_lshr_b32 s40, s{S_LI}, 3\ns_add_u32 s{S_CT}, s{S_CT}, s40")
    for r, n in ((R_X, 0x400000), (R_W, 0x600000), (R_WO, 0x200000), (R_BX, 0x400000), (R_OUT, 0x800000), (R_WS, 0x1000000), (S_DBG, 16)):
        a(f"s_mov_b32 s{r+2}, {hex(n)}\ns_mov_b32 s{r+3}, 0x20000")
    a(f"s_lshl_b32 s{S_RB2}, s{S_XCD}, 1\ns_and_b32 s40, s{S_LI}, 1\ns_add_u32 s{S_RB2}, s{S_RB2}, s40\ns_lshr_b32 s{S_CT2}, s{S_LI}, 1")
    a(f"s_add_u32 s{S_H0}, s{S_RB2}, s{S_CT2}\ns_and_b32 s{S_H0}, s{S_H0}, 15\ns_lshl_b32 s{S_H0}, s{S_H0}, 1")
    a(f"s_cmp_lt_u32 s{S_WAVE}, 4\ns_cbranch_scc1 L_compute")

    VX, VW, VXB, VWO = 10, 16, 22, 23
    VF, VG, VH, VC, VS, VNS, VTC, VTS = 24, 28, 60, 64, 72, 80, 88, 104
    S_KX, S_KW, S_LB = 44, 45, 46
    a(f"s_sub_u32 s{S_WAVE}, s{S_WAVE}, 4")
    a("v_lshrrev_b32 v3, 3, v2\nv_and_b32 v4, 7, v2\nv_lshrrev_b32 v5, 4, v2")
    a(f"s_and_b32 s41, s{S_WAVE}, 1\ns_lshl_b32 s42, s41, 2\nv_add_u32 v6, s42, v5\nv_xor_b32 v6, v6, v4\nv_lshlrev_b32 v6, 4, v6")
    a(f"s_lshl_b32 s42, s{S_RB}, 7\ns_lshl_b32 s43, s{S_WAVE}, 3\ns_add_u32 s42, s42, s43\ns_sub_u32 s42, s42, 16")
    a(f"v_add_u32 v7, s42, v3\nv_lshl_add_u32 v{VX+1}, v7, 11, v6")
    a(f"s_cmp_lt_i32 s42, 0\ns_cselect_b32 s43, 0x8000, 0\nv_add_u32 v{VX}, s43, v{VX+1}")
    for n in range(4, 0, -1):
        a(f"v_add_u32 v{VX+n}, {n*65536}, v{VX+1}")
    a(f"v_and_b32 v7, 1, v5\ns_lshl_b32 s42, s41, 1\nv_add_u32 v7, s42, v7\nv_lshlrev_b32 v7, 1, v7\nv_xor_b32 v7, v7, v4\nv_lshlrev_b32 v7, 4, v7")
    a(f"s_lshl_b32 s42, s{S_WAVE}, 3\nv_add_u32 v8, s42, v3\nv_mul_u32_u24 v8, 6144, v8\ns_lshl_b32 s42, s{S_CT}, 7\nv_add3_u32 v{VW}, v7, v8, s42")
    for i in range(1, 6):
        a(f"v_add_u32 v{VW+i}, {(i >> 1)*2048 + (i & 1)*32*6144}, v{VW}")
    a(f"s_lshr_b32 s42, s{S_RB}, 2\ns_lshr_b32 s43, s{S_CT}, 2\ns_add_u32 s42, s42, s43\ns_and_b32 s42, s42, 3")
    a(f"s_lshl_b32 s{S_KX}, s42, 9\ns_mul_i32 s{S_KW}, s42, {4*393216}\ns_lshl_b32 s{S_LB}, s{S_WAVE}, 10")

    def issue(sl, nx):
        for n in range(nx):
            a(f"s_add_u32 m0, s{S_LB}, {XB+sl*SLOT+n*4096}\nbuffer_load_dwordx4 v{VX+n}, {srd(R_X)}, s{S_KX} offen lds")
        for i in range(6):
            a(f"s_add_u32 m0, s{S_LB}, {WB+sl*SLOT+(i >> 1)*8192+(i & 1)*4096}\nbuffer_load_dwordx4 v{VW+i}, {srd(R_W)}, s{S_KW} offen lds")
        a(f"s_add_u32 s{S_KX}, s{S_KX}, 128\ns_and_b32 s{S_KX}, s{S_KX}, 2047\ns_add_u32 s{S_KW}, s{S_KW}, 393216")
        a(f"s_cmp_ge_u32 s{S_KW}, 0x600000\ns_cselect_b32 s{S_KW}, 0, s{S_KW}")

    def issue_wo(first, count):
        a(f"s_add_u32 s47, s{S_WAVE}, {first}")
        for i in range(count):
            a(f"s_lshl_b32 m0, s47, 10\ns_lshl_b32 s48, s{S_H0}, 2\ns_add_u32 s48, s48, s47\ns_and_b32 s48, s48, 127\ns_lshl_b32 s48, s48, 14")
            a(f"buffer_load_dwordx4 v{VWO}, {srd(R_WO)}, s48 offen lds\ns_add_u32 s47, s47, 4")

    def cosrow(dst, x0, dx, tmp):
        for i in range(8):
            a(f"v_cos_f32 v{tmp+i}, v{x0}")
            if i < 7: a(f"v_add_f32 v{x0}, v{x0}, v{dx}")
        for i in range(4):
            a(f"v_cvt_pk_bf16_f32 v{dst+i}, v{tmp+2*i}, v{tmp+2*i+1}")

    def b1_consts():
        T = 120
        ph8 = 49
        a(f"s_lshr_b32 s{ph8}, s{S_WAVE}, 1\ns_lshl_b32 s{ph8}, s{ph8}, 3")
        a(f"v_bfe_u32 v{T}, v2, 3, 1\nv_and_b32 v{T+1}, 3, v2\nv_lshl_add_u32 v{T}, v{T}, 2, v{T+1}\nv_add_u32 v{T}, s{ph8}, v{T}")
        a(f"v_bfe_u32 v{T+1}, v2, 2, 1\nv_cvt_f32_u32 v{T+2}, v{T+1}\nv_mul_f32 v{T+2}, 0.25, v{T+2}" .replace("0.25", f32(0.25)))
        a(f"v_cmp_eq_u32 vcc, 0, v{T}\nv_lshlrev_b32 v{T+1}, 4, v{T+1}\nv_cndmask_b32 v{T}, v{T}, v{T+1}, vcc\nv_cndmask_b32 v{T+2}, v{T+2}, 0, vcc")
        a(f"v_cvt_f32_u32 v{T}, v{T}\nv_mul_f32 v{T+3}, {f32(1/32)}, v{T}\nv_cvt_f32_u32 v{T+4}, v5\nv_mul_f32 v{T+4}, {f32(8.0)}, v{T+4}")
        a(f"v_fma_f32 v{T+2}, v{T+3}, v{T+4}, v{T+2}")
        cosrow(VF, T+2, T+3, T+8)
        Q, CP, PH, P0 = T+16, T+17, T+18, T+19
        a(f"v_bfe_u32 v{Q}, v2, 1, 3\nv_and_b32 v{CP}, 1, v2\nv_bfe_u32 v{T}, v2, 4, 1\nv_sub_u32 v{T+1}, v{CP}, v{T}")
        a(f"v_cvt_f32_i32 v{PH}, v{T+1}\nv_mul_f32 v{PH}, {f32(0.25)}, v{PH}")
        a(f"v_lshrrev_b32 v{T+1}, 5, v2\nv_lshlrev_b32 v{T+1}, 2, v{T+1}\nv_add_u32 v{P0}, s{ph8}, v{T+1}")
        a(f"v_lshl_add_u32 v{T+5}, v{Q}, 5, v{P0}")
        a(f"v_cvt_f32_u32 v{T+6}, s{S_XCD}\nv_mul_f32 v{T+6}, {f32(1/2048)}, v{T+6}")
        a("s_mov_b32 s50, -1\ns_mov_b32 s51, 0")
        for j in range(4):
            X0, DX = T+2, T+3
            if j == 0:
                a(f"v_cmp_eq_u32 s[52:53], 0, v{P0}\nv_cmp_eq_u32 vcc, 1, v{T}\ns_and_b64 s[54:55], s[52:53], vcc")
                a(f"v_lshlrev_b32 v{T+1}, 5, v{Q}\nv_subrev_u32 v{T+1}, 112, v{T+1}\nv_cndmask_b32 v{T+1}, v{T+5}, v{T+1}, s[54:55]")
                a(f"v_cvt_f32_u32 v{T+4}, v{CP}\nv_mul_f32 v{T+4}, {f32(0.25)}, v{T+4}\nv_cndmask_b32 v{T+4}, v{PH}, v{T+4}, s[52:53]")
                a(f"v_cvt_f32_i32 v{T+1}, v{T+1}\nv_fma_f32 v{X0}, v{T+1}, v{T+6}, v{T+4}\nv_mul_f32 v{DX}, {f32(1/256)}, v{T+1}")
                a(f"v_lshrrev_b32 v{T+1}, 2, v{Q}\nv_cmp_ne_u32 vcc, v{T+1}, v{T}\ns_and_b64 s[54:55], s[52:53], vcc")
                a(f"v_mov_b32 v{T+4}, {f32(0.25)}\nv_cndmask_b32 v{X0}, v{X0}, v{T+4}, s[54:55]\nv_cndmask_b32 v{DX}, v{DX}, 0, s[54:55]")
                a(f"v_cmp_eq_u32 vcc, 1, v2\ns_and_b64 s[54:55], s[52:53], vcc")
                a(f"v_cndmask_b32 v{X0}, v{X0}, 0, s[54:55]\nv_cndmask_b32 v{DX}, v{DX}, 0.5, s[54:55]")
            else:
                a(f"v_add_u32 v{T+1}, {j}, v{T+5}\nv_cvt_f32_u32 v{T+1}, v{T+1}\nv_fma_f32 v{X0}, v{T+1}, v{T+6}, v{PH}\nv_mul_f32 v{DX}, {f32(1/256)}, v{T+1}")
            cosrow(T+20, X0, DX, T+8)
            for i in range(4):
                a(f"v_cndmask_b32 v{VG+8*j+i}, 0, v{T+20+i}, s[50:51]\nv_cndmask_b32 v{VG+8*j+4+i}, v{T+20+i}, 0, s[50:51]")

    XF, XA, XP, XD = 120, 152, 184, 200
    def b1_compute():
        a(f"v_bfe_u32 v6, v2, 2, 2\nv_lshl_add_u32 v6, v5, 3, v6\nv_lshlrev_b32 v6, 6, v6\nv_and_b32 v7, 3, v2\nv_lshl_add_u32 v6, v7, 3, v6")
        a(f"s_and_b32 s41, s{S_WAVE}, 1\nv_and_b32 v7, 1, v5\nv_xor_b32 v7, s41, v7\nv_lshl_add_u32 v6, v7, 5, v6\nv_add_u32 v6, {LDS_B}, v6")
        for b in range(8):
            for u in range(2):
                a(f"ds_read_b64_tr_b16 {vr(XF+4*b+2*u, 2)}, v6 offset:{b*2048+u*256}")
        for b in range(8):
            a(f"s_waitcnt lgkmcnt({max(0, 12-2*b) if b < 7 else 0})\nv_mfma_f32_16x16x32_bf16 {vr(XA+4*b, 4)}, {vr(VF, 4)}, {vr(XF+4*b, 4)}, 0")
        for j in range(4):
            for i in range(4):
                a(f"v_cvt_pk_bf16_f32 v{XP+4*j+i}, v{XA+8*i+j}, v{XA+8*i+4+j}")
        for j in range(4):
            for w in range(2):
                a(f"v_mfma_f32_16x16x32_bf16 {vr(XF+8*j+4*w, 4)}, {vr(XP+4*j, 4)}, {vr(VG+8*j+4*w, 4)}, 0")
        for j in range(4):
            for w in range(2):
                for i in range(2):
                    a(f"v_cvt_pk_bf16_f32 v{XD+4*j+2*w+i}, v{XF+8*j+4*w+2*i}, v{XF+8*j+4*w+2*i+1}")
    def b1_write():
        a(f"v_and_b32 v6, 15, v2\nv_lshlrev_b32 v6, 6, v6\ns_and_b32 s41, s{S_WAVE}, 1\ns_lshl_b32 s41, s41, 1\nv_lshrrev_b32 v7, 5, v2\nv_add_u32 v7, s41, v7")
        a(f"v_bfe_u32 v8, v2, 1, 2\nv_xor_b32 v7, v7, v8\nv_lshl_add_u32 v6, v7, 4, v6\nv_and_b32 v7, 1, v5\nv_lshl_add_u32 v6, v7, 3, v6")
        a(f"s_lshr_b32 s41, s{S_WAVE}, 1\ns_lshl_b32 s41, s41, 13\ns_add_u32 s41, s41, {LDS_B}\nv_add_u32 v6, s41, v6")
        for j in range(4):
            for w in range(2):
                a(f"ds_write_b64 v6, {vr(XD+4*j+2*w, 2)} offset:{(4*w+j)*1024}")
        a("s_waitcnt lgkmcnt(0)")
    def b1_store():
        a(f"s_lshl_b32 s41, s{S_WAVE}, 12\ns_add_u32 s41, s41, {LDS_B}\nv_lshlrev_b32 v6, 4, v2\nv_add_u32 v6, s41, v6")
        for i in range(4):
            a(f"ds_read_b128 {vr(XF+4*i, 4)}, v6 offset:{i*1024}")
        a("v_bfe_u32 v7, v2, 3, 2\nv_and_b32 v8, 3, v2\nv_xor_b32 v7, v7, v8\nv_lshlrev_b32 v7, 4, v7")
        a("v_lshl_add_u32 v7, v3, 15, v7\nv_bfe_u32 v8, v2, 2, 1\nv_lshl_add_u32 v7, v8, 11, v7")
        a(f"s_lshl_b32 s41, s{S_WAVE}, 20\ns_lshl_b32 s42, s{S_XCD}, 12\ns_add_u32 s41, s41, s42\ns_lshl_b32 s42, s{S_LI}, 6\ns_add_u32 s41, s41, s42\ns_add_u32 s41, s41, {WS_V}")
        for i in range(4):
            a(f"s_waitcnt lgkmcnt({3-i})\nbuffer_store_dwordx4 {vr(XF+4*i, 4)}, v7, {srd(R_WS)}, s41 offen sc1\ns_add_u32 s41, s41, 0x40000")

    VR_, VOP, VZ = 120, 152, 184
    def b2_poll():
        lab = a.newlabel("vpoll"); done = a.newlabel("vdone")
        a(f"s_mov_b32 s47, {SPIN}")
        a.label(lab)
        a(f"s_waitcnt vmcnt(0)\nv_readfirstlane_b32 s48, v7\ns_cmp_ge_u32 s48, 256\ns_cbranch_scc1 {done}")
        a(f"s_sleep 2\nbuffer_load_dword v7, v6, {srd(S_DBG)}, 0 offen sc1\ns_sub_u32 s47, s47, 1\ns_cmp_lg_u32 s47, 0\ns_cbranch_scc1 {lab}\ns_waitcnt vmcnt(0)")
        a.label(done)
    def b2_load():
        a(f"v_and_b32 v6, 15, v2\nv_lshlrev_b32 v6, 4, v6\nv_lshrrev_b32 v7, 5, v2\nv_lshl_add_u32 v6, v7, 8, v6\nv_and_b32 v7, 1, v5\nv_lshl_add_u32 v6, v7, 14, v6")
        a(f"s_lshl_b32 s41, s{S_XCD}, 4\ns_add_u32 s41, s41, s{S_CT2}\ns_lshl_b32 s41, s41, 15\ns_lshl_b32 s42, s{S_WAVE}, 9\ns_add_u32 s41, s41, s42\ns_add_u32 s41, s41, {WS_V}")
        for s2l in range(4):
            for c in range(2):
                a(f"buffer_load_dwordx4 {vr(VR_+8*s2l+4*c, 4)}, v6, {srd(R_WS)}, s41 offen offset:{c*2048} sc1")
            a("s_add_u32 s41, s41, 4096")
    def b2_radix8():
        a("s_mov_b32 s41, 0x05040100\ns_mov_b32 s42, 0x07060302")
        for i in range(8):
            for u in range(4):
                a(f"v_perm_b32 v{VOP+4*i+u}, v{VR_+8*u+4+(i >> 1)}, v{VR_+8*u+(i >> 1)}, s{41+(i & 1)}")
        for i in range(8):
            a(f"v_mfma_f32_16x16x32_bf16 {vr(VZ+4*i, 4)}, {vr(VH, 4)}, {vr(VOP+4*i, 4)}, 0")
        a(f"v_and_b32 v6, 15, v2\nv_lshlrev_b32 v6, 4, v6\nv_lshrrev_b32 v7, 5, v2\nv_lshl_add_u32 v6, v7, 8, v6\nv_and_b32 v7, 1, v5\nv_lshl_add_u32 v6, v7, 13, v6")
        a(f"s_lshl_b32 s41, s{S_WAVE}, 9\ns_add_u32 s41, s41, {LDS_B}\nv_add_u32 v6, s41, v6")
        for j in range(4):
            for i in range(4):
                a(f"v_cvt_pk_bf16_f32 v{VOP+4*j+i}, v{VZ+8*i+j}, v{VZ+8*i+4+j}")
            a(f"ds_write_b128 v6, {vr(VOP+4*j, 4)} offset:{j*2048}")
        a("s_waitcnt lgkmcnt(0)")
    S_T, S_REAL, S_PASS = 50, 51, 52
    VZA, VYA, VYM, VNB = 6, 7, 8, 9
    def b2_row_setup():
        a(f"s_lshl_b32 s41, s{S_XCD}, 4\ns_add_u32 s41, s41, s{S_CT2}\ns_lshr_b32 s42, s41, 3\ns_and_b32 s43, s41, 7")
        a(f"s_lshl_b32 s47, s43, 5\ns_add_u32 s48, s47, s42\ns_sub_u32 s47, s47, 112\ns_cmp_ge_u32 s41, 4\ns_cselect_b32 s47, s47, s48\ns_cmp_ge_u32 s41, 8\ns_cselect_b32 s48, s48, s47")
        a(f"s_and_b32 s43, s{S_LI}, 1\ns_lshl_b32 s47, s43, 2\ns_add_u32 s47, s47, s{S_WAVE}\ns_lshl_b32 s47, s47, 8\ns_add_u32 s{S_T}, s48, s47")
        a(f"s_lshl_b32 s47, s43, 7\ns_lshl_b32 s48, s{S_WAVE}, 8\ns_add_u32 s47, s47, s48\ns_cmp_eq_u32 s41, 0\ns_cselect_b32 s{S_T}, s47, s{S_T}")
        a(f"s_cmp_eq_u32 s{S_T}, 0\ns_cselect_b32 s{S_REAL}, 1, 0\ns_mov_b32 s{S_PASS}, 0")
        a(f"v_lshrrev_b32 v{VZA}, 5, v2\nv_bfe_u32 v120, v2, 2, 2\nv_lshl_add_u32 v{VZA}, v{VZA}, 2, v120\nv_lshlrev_b32 v{VZA}, 6, v{VZA}")
        a(f"v_and_b32 v120, 1, v5\nv_lshl_add_u32 v{VZA}, v120, 5, v{VZA}\nv_and_b32 v120, 3, v2\nv_lshl_add_u32 v{VZA}, v120, 3, v{VZA}")
        a(f"s_lshl_b32 s41, s{S_WAVE}, 12\ns_add_u32 s41, s41, {LDS_B}\nv_add_u32 v{VZA}, s41, v{VZA}")
        a(f"v_and_b32 v120, 4, v2\nv_lshlrev_b32 v120, 2, v120\nv_lshrrev_b32 v121, 1, v2\nv_and_b32 v121, 12, v121\nv_and_b32 v122, 3, v2\nv_or_b32 v120, v120, v121\nv_or_b32 v120, v120, v122")
        a(f"v_and_b32 v121, 32, v2\nv_lshl_add_u32 v121, v120, 6, v121\nv_add_u32 v{VYA}, 2048, v121\nv_sub_u32 v{VYM}, 4064, v121")
        a(f"v_add_u32 v120, 1, v120\nv_and_b32 v121, 12, v120\nv_lshlrev_b32 v121, 1, v121\nv_lshrrev_b32 v122, 2, v120\nv_and_b32 v122, 4, v122\nv_and_b32 v120, 3, v120\nv_or_b32 v120, v120, v121\nv_or_b32 v120, v120, v122")
        a(f"v_add_u32 v121, 32, v2\nv_cmp_gt_u32 vcc, 32, v2\nv_cndmask_b32 v120, v120, v121, vcc\nv_lshlrev_b32 v{VNB}, 2, v120")
    def b2_row():
        UR, UI, DR, DI, E, Y, O = 120, 128, 136, 152, 168, 184, 200
        for c, U in ((0, UR), (1, UI)):
            for st in range(2):
                for u in range(2):
                    a(f"ds_read_b64_tr_b16 {vr(U+4*st+2*u, 2)}, v{VZA} offset:{c*2048+st*1024+u*512}")
        lab = a.newlabel("cplx")
        a(f"s_waitcnt lgkmcnt(0)\ns_cmp_eq_u32 s{S_REAL}, 0\ns_cbranch_scc1 {lab}")
        for i in range(8): a(f"v_mov_b32 v{UI+i}, 0")
        a("s_nop 1")
        a.label(lab)
        M = "v_mfma_f32_32x32x16_bf16"
        a(f"{M} {vr(DR,16)}, {vr(UR,4)}, {vr(VC,4)}, 0\n{M} {vr(DI,16)}, {vr(UI,4)}, {vr(VC,4)}, 0")
        for D, U, K in ((DR, UR+4, VC+4), (DI, UI+4, VC+4), (DR, UI, VS), (DI, UR, VNS), (DR, UI+4, VS+4), (DI, UR+4, VNS+4)):
            a(f"{M} {vr(D,16)}, {vr(U,4)}, {vr(K,4)}, {vr(D,16)}")
        for r in range(16):
            a(f"v_mul_f32 v{Y+r}, v{DR+r}, v{VTC+r}\nv_mul_f32 v{O+r}, v{DI+r}, v{VTC+r}")
            a(f"v_fmac_f32 v{Y+r}, v{DI+r}, v{VTS+r}\nv_fma_f32 v{O+r}, -v{DR+r}, v{VTS+r}, v{O+r}")
        for i in range(8):
            a(f"v_cvt_pk_bf16_f32 v{E+i}, v{Y+2*i}, v{Y+2*i+1}\nv_cvt_pk_bf16_f32 v{E+8+i}, v{O+2*i}, v{O+2*i+1}")
        a(f"{M} {vr(DR,16)}, {vr(E,4)}, {vr(VC,4)}, 0")
        for A_, K in ((E+4, VC+4), (E+8, VS), (E+12, VS+4)):
            a(f"{M} {vr(DR,16)}, {vr(A_,4)}, {vr(K,4)}, {vr(DR,16)}")
        a(f"s_lshl_b32 s41, s{S_T}, 12\ns_sub_u32 s42, 2048, s{S_T}\ns_lshl_b32 s42, s42, 12")
        a(f"ds_bpermute_b32 v{DI}, v{VNB}, v{DR}")
        for i in range(8):
            a(f"v_cvt_pk_bf16_f32 v{Y+i}, v{DR+2*i}, v{DR+2*i+1}")
        a(f"buffer_store_dwordx4 {vr(Y,4)}, v{VYA}, {srd(R_OUT)}, s41 offen\nbuffer_store_dwordx4 {vr(Y+4,4)}, v{VYA}, {srd(R_OUT)}, s41 offen offset:16")
        lab2 = a.newlabel("nomir")
        a(f"s_waitcnt lgkmcnt(0)\ns_cmp_lg_u32 s{S_REAL}, 0\ns_cbranch_scc1 {lab2}")
        a(f"v_cvt_pk_bf16_f32 v{O}, v{DI}, v{DR+15}")
        for i in range(1, 8):
            a(f"v_cvt_pk_bf16_f32 v{O+i}, v{DR+16-2*i}, v{DR+15-2*i}")
        a(f"buffer_store_dwordx4 {vr(O,4)}, v{VYM}, {srd(R_OUT)}, s42 offen\nbuffer_store_dwordx4 {vr(O+4,4)}, v{VYM}, {srd(R_OUT)}, s42 offen offset:16")
        a.label(lab2)

    a("s_waitcnt lgkmcnt(0)")
    stamp(1)
    a(f"s_cmp_ge_u32 s{S_WAVE}, 2\ns_cbranch_scc1 L_l1")
    for ver in range(2):
        nx = 5 - ver; n = nx + 6
        if ver == 1: a.label("L_l1")
        for sl in range(3): issue(sl, nx)
        a(f"v_lshrrev_b32 v7, 5, v2\nv_lshlrev_b32 v7, 1, v7\nv_and_b32 v8, 3, v2\nv_xor_b32 v7, v7, v8\nv_lshlrev_b32 v7, 4, v7\nv_lshrrev_b32 v8, 2, v2\nv_lshl_add_u32 v{VXB}, v8, 17, v7")
        a(f"s_lshl_b32 s41, s{S_XCD}, 11\ns_lshl_b32 s42, s{S_LI}, 6\ns_add_u32 s41, s41, s42\ns_lshl_b32 s42, s{S_WAVE}, 15\ns_add_u32 s41, s41, s42\ns_lshl_b32 s43, s{S_WAVE}, 12")
        for i in range(4):
            a(f"s_add_u32 m0, s43, {LDS_B+i*1024}\ns_add_u32 s42, s41, {(i & 1)*0x200000 + (i >> 1)*16384}\nbuffer_load_dwordx4 v{VXB}, {srd(R_BX)}, s42 offen lds")
        a(f"v_bfe_u32 v7, v2, 1, 1\nv_and_b32 v8, 1, v2\nv_lshlrev_b32 v7, 7, v7\nv_lshl_add_u32 v7, v8, 2, v7\nv_mov_b32 v8, 0")
        a(f"s_lshl_b32 s41, s{S_RB}, 8\ns_lshl_b32 s42, s{S_CT}, 3\ns_add_u32 s41, s41, s42\ns_add_u32 s41, s41, {WS_F}")
        a(f"buffer_store_dword v8, v7, {srd(R_WS)}, s41 offen sc1")
        a(f"v_lshlrev_b32 v7, 1, v5\nv_xor_b32 v7, v7, v4\nv_lshlrev_b32 v7, 4, v7\nv_lshl_add_u32 v7, v3, 11, v7\ns_lshl_b32 s41, s{S_CT2}, 7\nv_add_u32 v{VWO}, s41, v7")
        b1_consts()
        q = [("D", 0)] * n + [("D", 1)] * n + [("D", 2)] * n + [("X", 0)] * 5
        def wait_for(tag):
            if tag not in q: return 63
            last = max(i for i, t in enumerate(q) if t == tag)
            return len(q) - 1 - last
        for j in range(16):
            a(f"s_waitcnt vmcnt({wait_for(('D', j))})\ns_barrier")
            if j in (0, 3, 8, 13): stamp({0: 2, 3: 3, 8: 4, 13: 5}[j])
            if j == 13:
                b2_poll(); q = []
            if 1 <= j <= 13:
                issue((j + 2) % 3, nx); q += [("D", j + 2)] * n
            if j == 1:
                a(f"v_lshlrev_b32 v6, 4, v2\nv_add_u32 v6, {LDS_C}, v6")
                for i in range(15):
                    a(f"ds_read_b128 {vr(VH+4*i, 4)}, v6 offset:{i*1024}")
            if j == 2: a("s_waitcnt lgkmcnt(0)")
            if j == 3: b1_compute()
            if j == 4: b1_write()
            if j == 5:
                b1_store(); q += [("S", 0)] * 4
            if j == 12:
                a(f"v_mov_b32 v6, 0\nbuffer_load_dword v7, v6, {srd(S_DBG)}, 0 offen sc1"); q += [("P", 0)]
            if j == 13:
                b2_load(); q += [("V", 0)] * 8
            if j == 14:
                issue_wo(42, 11 - ver); q += [("W", 0)] * (11 - ver)
                a(f"s_waitcnt vmcnt({wait_for(('V', 0))})")
                b2_radix8()
            if j == 15:
                issue_wo(84, 11)
                b2_row_setup()
        a("s_barrier")
        issue_wo(0, 11 - ver)
        a("s_branch L_ltail" if ver == 0 else "")
    a.label("L_ltail")
    a("s_barrier")
    stamp(6)
    a.label("L_row")
    b2_row()
    a(f"s_cmp_lg_u32 s{S_PASS}, 0\ns_cbranch_scc1 L_ldone")
    a(f"s_cmp_lg_u32 s{S_REAL}, 0\ns_cbranch_scc1 L_w2\ns_waitcnt vmcnt(4)\ns_branch L_w3")
    a.label("L_w2")
    a("s_waitcnt vmcnt(2)")
    a.label("L_w3")
    stamp(7)
    a(f"s_barrier\ns_cmp_eq_u32 s{S_REAL}, 0\ns_cbranch_scc1 L_ldone")
    a(f"s_mov_b32 s{S_PASS}, 1\ns_movk_i32 s{S_T}, 1024\nv_add_u32 v{VZA}, 2048, v{VZA}\ns_branch L_row")
    a.label("L_ldone")
    dump_stamps(0, 8, S_WAVE, 120)
    a("s_endpgm")

    a.label("L_compute")
    ACC, FA, FB, AX, AH, AW = 0, 104, 148, 192, 198, 204
    LN, L16, SELA, SELB = 210, 211, 212, 213
    T = 214
    a(f"v_mov_b32 v{LN}, v2\nv_lshlrev_b32 v{L16}, 4, v2")
    a(f"v_and_b32 v3, 4, v2\nv_lshlrev_b32 v3, 2, v3\nv_lshrrev_b32 v4, 1, v2\nv_and_b32 v4, 12, v4\nv_and_b32 v5, 3, v2\nv_or_b32 v3, v3, v4\nv_or_b32 v3, v3, v5")
    a(f"s_mov_b32 s41, {f32(1/32)}\ns_cmp_ge_u32 s{S_WAVE}, 2\ns_cselect_b32 s41, {f32(1/1024)}, s41\ns_and_b32 s42, s{S_WAVE}, 1\ns_cselect_b32 s42, {f32(-0.25)}, 0")
    a(f"v_cvt_f32_u32 v3, v3\nv_mul_f32 v3, s41, v3\nv_lshrrev_b32 v4, 5, v2\nv_lshlrev_b32 v4, 2, v4\nv_cvt_f32_u32 v4, v4\nv_mov_b32 v5, s42\nv_fma_f32 v4, v3, v4, v5")
    for i in range(16):
        a(f"v_fmamk_f32 v{8+i}, v3, {f32(8*(i >> 2) + (i & 3))}, v4")
    for i in range(16):
        a(f"v_cos_f32 v{8+i}, v{8+i}")
    a(f"v_add_u32 v6, {LDS_C}, v{L16}\ns_cmp_ge_u32 s{S_WAVE}, 2\ns_cbranch_scc1 L_tw")
    for i in range(8):
        a(f"v_cvt_pk_bf16_f32 v{24+i}, v{8+2*i}, v{9+2*i}")
    a(f"s_cmp_eq_u32 s{S_WAVE}, 0\ns_cbranch_scc1 L_cc")
    for i in range(8):
        a(f"v_xor_b32 v{32+i}, 0x80008000, v{24+i}")
    a(f"ds_write_b128 v6, v[24:27] offset:3072\nds_write_b128 v6, v[28:31] offset:4096\nds_write_b128 v6, v[32:35] offset:5120\nds_write_b128 v6, v[36:39] offset:6144\ns_branch L_cdone")
    a.label("L_cc")
    a(f"ds_write_b128 v6, v[24:27] offset:1024\nds_write_b128 v6, v[28:31] offset:2048")
    a(f"v_bfe_u32 v8, v2, 1, 2\nv_and_b32 v9, 1, v2\ns_and_b32 s41, s{S_LI}, 1\ns_lshl_b32 s42, s41, 2\nv_add_u32 v10, s42, v8\nv_cvt_f32_u32 v10, v10\nv_mul_f32 v10, {f32(0.125)}, v10")
    a(f"v_cvt_f32_u32 v11, v9\nv_mul_f32 v11, {f32(0.25)}, v11\nv_add_f32 v12, {f32(-0.25)}, v11")
    a(f"v_lshrrev_b32 v13, 5, v2\nv_bfe_u32 v14, v2, 3, 1\nv_cmp_eq_u32 vcc, v13, v14\nv_cndmask_b32 v13, 0, 1.0, vcc\nv_mov_b32 v14, v13")
    a(f"s_lshl_b32 s42, s{S_XCD}, 4\ns_add_u32 s42, s42, s{S_CT2}\ns_cmp_lg_u32 s42, 0\ns_cbranch_scc1 L_hgen")
    a(f"s_cmp_eq_u32 s41, 0\ns_cbranch_scc0 L_h1")
    a(f"v_mov_b32 v14, 0\nv_and_b32 v15, 7, v2\nv_cmp_eq_u32 vcc, 1, v15\nv_cndmask_b32 v10, v10, 0.5, vcc\nv_cndmask_b32 v11, v11, 0, vcc\ns_branch L_hgen")
    a.label("L_h1")
    a(f"v_mov_b32 v13, 0\nv_mov_b32 v12, v11\nv_lshl_add_u32 v15, v8, 1, 1\nv_cvt_f32_u32 v10, v15\nv_mul_f32 v10, {f32(1/16)}, v10")
    a.label("L_hgen")
    a(f"v_bfe_u32 v15, v2, 4, 1\nv_lshlrev_b32 v15, 2, v15\nv_cvt_f32_u32 v15, v15\nv_fmac_f32 v11, v10, v15\nv_fmac_f32 v12, v10, v15")
    for i in range(4):
        a(f"v_cos_f32 v16, v11\nv_cos_f32 v17, v12\nv_add_f32 v11, v11, v10\nv_add_f32 v12, v12, v10\nv_mul_f32 v16, v16, v13\nv_mul_f32 v17, v17, v14\nv_cvt_pk_bf16_f32 v{24+32+i - 32 + 16}, v16, v17")
    a("ds_write_b128 v6, v[40:43]\ns_branch L_cdone")
    a.label("L_tw")
    a(f"s_sub_u32 s41, s{S_WAVE}, 2\ns_lshl_b32 s41, s41, 12\nv_add_u32 v6, s41, v6")
    for i in range(4):
        a(f"ds_write_b128 v6, {vr(8+4*i, 4)} offset:{7168+i*1024}")
    a.label("L_cdone")
    a(f"v_and_b32 v{T}, 15, v{LN}\nv_lshrrev_b32 v{T+1}, 4, v{LN}")
    a(f"v_lshrrev_b32 v{T+2}, 1, v{T}\nv_xor_b32 v{T+2}, v{T+2}, v{T+1}\nv_lshlrev_b32 v{T+2}, 4, v{T+2}\nv_lshl_add_u32 v{T+2}, v{T}, 7, v{T+2}\nv_xor_b32 v{T+3}, 64, v{T+2}")
    a(f"s_lshr_b32 s41, s{S_WAVE}, 1\ns_lshl_b32 s41, s41, 13\ns_add_u32 s41, s41, 2048")
    for sl in range(3):
        for kk in range(2):
            a(f"v_add_u32 v{AH+2*sl+kk}, {XB+sl*SLOT}, v{T+2+kk}\nv_add_u32 v{AX+2*sl+kk}, s41, v{AH+2*sl+kk}")
    a(f"v_lshrrev_b32 v{T+4}, 2, v{T}\nv_and_b32 v{T+5}, 3, v{T}")
    a(f"v_lshl_add_u32 v{T+6}, v{T+1}, 3, v{T+4}\nv_lshlrev_b32 v{T+6}, 7, v{T+6}")
    a(f"v_lshrrev_b32 v{T+7}, 1, v{T+4}\nv_and_b32 v{T+8}, 1, v{T+1}\nv_lshl_add_u32 v{T+7}, v{T+8}, 1, v{T+7}\nv_lshlrev_b32 v{T+7}, 1, v{T+7}")
    a(f"s_and_b32 s41, s{S_WAVE}, 1\ns_lshl_b32 s41, s41, 2\nv_lshrrev_b32 v{T+8}, 1, v{T+5}\nv_add_u32 v{T+9}, s41, v{T+8}")
    a(f"v_xor_b32 v{T+9}, v{T+9}, v{T+7}\nv_lshl_add_u32 v{T+6}, v{T+9}, 4, v{T+6}")
    a(f"v_and_b32 v{T+5}, 1, v{T+5}\nv_lshl_add_u32 v{T+6}, v{T+5}, 3, v{T+6}\nv_xor_b32 v{T+9}, 32, v{T+6}")
    for sl in range(3):
        a(f"v_add_u32 v{AW+2*sl}, {WB+sl*SLOT}, v{T+6}\nv_add_u32 v{AW+2*sl+1}, {WB+sl*SLOT}, v{T+9}")
    AWO = 240
    a(f"v_lshl_add_u32 v{T+6}, v{T+1}, 2, v{T+4}\nv_lshlrev_b32 v{T+6}, 7, v{T+6}\nv_lshl_add_u32 v{T+6}, v{T+5}, 3, v{T+6}")
    a(f"v_xor_b32 v{T+8}, v{T+8}, v{T+7}\nv_lshl_add_u32 v{AWO}, v{T+8}, 4, v{T+6}")
    for nb in range(1, 4):
        a(f"v_xor_b32 v{AWO+nb}, {32*nb}, v{AWO}")
    M_PAR, M_P, M_C, M_P0 = 56, 58, 62, 66
    a(f"s_mov_b32 s{M_PAR}, 0xaaaaaaaa\ns_mov_b32 s{M_PAR+1}, 0xaaaaaaaa")
    a(f"v_and_b32 v{T+2}, 1, v{T}\nv_lshl_add_u32 v{T+2}, v{T+1}, 2, v{T+2}\nv_add_u32 v{T+3}, 2, v{T+2}\nv_add_u32 v{T+4}, 2, v{T}")
    a(f"v_cmp_ge_u32 s[{M_P}:{M_P+1}], v{T+2}, v{T+4}\nv_cmp_ge_u32 s[{M_P+2}:{M_P+3}], v{T+3}, v{T+4}")
    a(f"v_cmp_le_u32 s[{M_C}:{M_C+1}], v{T+2}, v{T}\nv_cmp_le_u32 s[{M_C+2}:{M_C+3}], v{T+3}, v{T}")
    a(f"v_mov_b32 v{T+2}, 0x0c0c0100\nv_mov_b32 v{T+3}, 0x01000c0c\nv_cndmask_b32 v{SELA}, v{T+2}, v{T+3}, s[{M_PAR}:{M_PAR+1}]")
    a(f"v_mov_b32 v{T+2}, 0x0c0c0302\nv_mov_b32 v{T+3}, 0x03020c0c\nv_cndmask_b32 v{SELB}, v{T+2}, v{T+3}, s[{M_PAR}:{M_PAR+1}]")
    a(f"s_lshr_b32 s41, s{S_WAVE}, 1\ns_or_b32 s41, s41, s{S_RB}\ns_cmp_eq_u32 s41, 0")
    a(f"s_cselect_b64 s[{M_P0}:{M_P0+1}], 0, s[{M_P}:{M_P+1}]\ns_cselect_b64 s[{M_P0+2}:{M_P0+3}], 0, s[{M_P+2}:{M_P+3}]")
    a("s_waitcnt lgkmcnt(0)")
    for i in range(104): a(f"v_mov_b32 v{ACC+i}, 0")
    if prio: a("s_setprio 1")

    def reads(F, sl, kk):
        r = [f"ds_read_b64_tr_b16 {vr(F+20+8*sg+4*b+2*u, 2)}, v{AW+2*sl+b} offset:{sg*8192+kk*4096+u*512}" for sg in range(3) for b in range(2) for u in range(2)]
        x = [f"ds_read_b128 {vr(F+4*i, 4)}, v{AX+2*sl+kk} offset:{i*2048}" for i in range(4)]
        x.append(f"ds_read_b128 {vr(F+16, 4)}, v{AH+2*sl+kk}")
        return x[:1] + r[:4] + x[1:2] + r[4:8] + x[2:3] + r[8:] + x[3:]
    def mf(acc, xf, wf, transposed):
        return f"v_mfma_f32_16x16x32_bf16 {acc}, {wf}, {xf}, {acc}" if transposed else f"v_mfma_f32_16x16x32_bf16 {acc}, {xf}, {wf}, {acc}"
    def mfmas(F, rh):
        m = [mf(vr(ACC+96+4*b, 4), vr(F+16, 4), vr(F+20+4*(2+2*rh+b), 4), rh == 0) for b in range(2)]
        for i in (3, 2, 1, 0):
            for nb in (range(6) if i % 2 == 0 else range(5, -1, -1)):
                m.append(mf(vr(ACC+4*(6*i+nb), 4), vr(F+4*i, 4), vr(F+20+4*nb, 4), nb < 4))
        return m
    def step(F, rh, rd, bar):
        m = mfmas(F, rh)
        a("s_waitcnt lgkmcnt(0)")
        if bar:
            a(m[0]); a(m[1]); a("s_barrier"); m = m[2:]
        for i in range(len(m)):
            if i < len(rd) and bar: a(rd[i])
            a(m[i])
            if i < len(rd) and not bar: a(rd[i])
    KF, QF, VP, SS = 104, 124, 140, 160
    def cvt4(dst, src):
        a(f"v_cvt_pk_bf16_f32 v{dst}, v{src}, v{src+1}\nv_cvt_pk_bf16_f32 v{dst+1}, v{src+2}, v{src+3}")
    def cvt_k(i):
        cvt4(KF+4*(i+1), ACC+4*(6*i+2)); cvt4(KF+4*(i+1)+2, ACC+4*(6*i+3))
    def cvt_q(i):
        cvt4(QF+4*i, ACC+4*(6*i)); cvt4(QF+4*i+2, ACC+4*(6*i+1))
    def cvt_v(i):
        cvt4(VP+2*(i+1), ACC+4*(6*i+4)); cvt4(VP+10+2*(i+1), ACC+4*(6*i+5))
    EXA, EXB = T, T+1
    a(f"v_mov_b32 v{T+10}, 1\ns_cmp_eq_u32 s{S_WAVE}, 0\ns_cselect_b32 s70, 3, 0")
    a(f"s_and_b32 s41, s{S_WAVE}, 1\ns_lshl_b32 s41, s41, 12\ns_add_u32 s41, s41, {LDS_C}\nv_add_u32 v{EXA}, s41, v{L16}\nv_lshlrev_b32 v{EXB}, 3, v{LN}\nv_add_u32 v{EXB}, s41, v{EXB}")
    a(f"s_cmp_ge_u32 s{S_WAVE}, 2\ns_cbranch_scc1 L_c1")
    for rh in range(2):
        if rh == 1: a.label("L_c1")
        a("s_barrier")
        stamp(1)
        for r in reads(FA, 0, 0): a(r)
        a("s_mov_b32 s40, 5")
        a.label(f"L_cl{rh}")
        for sl in range(3):
            step(FA, rh, reads(FB, sl, 1), False)
            step(FB, rh, reads(FA, (sl+1) % 3, 0), True)
        if rh == 0:
            a(f"s_cmp_lg_u32 s40, s70\ns_cbranch_scc1 L_noarr\nbuffer_atomic_add v{T+10}, v{L16}, {srd(S_DBG)}, 0 offen")
            a.label("L_noarr")
        a(f"s_sub_u32 s40, s40, 1\ns_cmp_lg_u32 s40, 0\ns_cbranch_scc1 L_cl{rh}")
        step(FA, rh, reads(FB, 0, 1), False)
        step(FB, rh, [], True)
        stamp(2)
        if rh == 0:
            cvt4(KF, ACC+96); cvt4(KF+2, ACC+100)
            cvt_k(3); cvt_v(3)
            a(f"ds_write_b128 v{EXA}, {vr(KF+16, 4)}\nds_write_b64 v{EXB}, {vr(VP+8, 2)} offset:1024\nds_write_b64 v{EXB}, {vr(VP+18, 2)} offset:1536")
        else:
            cvt4(SS, ACC+96); cvt4(SS+2, ACC+100)
            a(f"ds_write_b64 v{EXB}, {vr(SS, 2)} offset:2048\nds_write_b64 v{EXB}, {vr(SS+2, 2)} offset:2560")
            cvt_k(3); cvt_v(3)
        cvt_q(3)
        for i in (2, 1, 0):
            cvt_k(i); cvt_q(i); cvt_v(i)
        a("s_waitcnt lgkmcnt(0)\ns_barrier")
        if rh == 0:
            a(f"ds_read_b64 {vr(VP, 2)}, v{EXB} offset:2048\nds_read_b64 {vr(VP+10, 2)}, v{EXB} offset:2560\ns_branch L_attn")
        else:
            a(f"ds_read_b128 {vr(KF, 4)}, v{EXA}\nds_read_b64 {vr(VP, 2)}, v{EXB} offset:1024\nds_read_b64 {vr(VP+10, 2)}, v{EXB} offset:1536")
    a.label("L_attn")
    for i in (3, 2, 1, 0):
        if i == 0: a("s_waitcnt lgkmcnt(0)")
        a(f"v_mfma_f32_16x16x32_bf16 {vr(SS+8*i+4, 4)}, {vr(KF+4*(i+1), 4)}, {vr(QF+4*i, 4)}, 0")
        a(f"v_mfma_f32_16x16x32_bf16 {vr(SS+8*i, 4)}, {vr(KF+4*i, 4)}, {vr(QF+4*i, 4)}, 0")
    Lr, Tr, Mx, Sm, PP, OO = 0, 16, 32, 40, 48, 64
    BL = (3, 2, 1, 0)
    a(f"s_mov_b32 s41, {f32(32 ** -0.5)}\ns_mov_b32 s42, {f32(1.4426950408889634)}\ns_mov_b32 s43, 0xffff0000\nv_mov_b32 v{T+2}, {f32(-1e9)}")
    for i in BL:
        for t in range(4):
            a(f"v_cndmask_b32 v{Lr+4*i+t}, v{SS+8*i+2*t}, v{SS+8*i+2*t+1}, s[{M_PAR}:{M_PAR+1}]")
    def round_bf16():
        for i in BL:
            for h in range(2):
                a(f"v_cvt_pk_bf16_f32 v{Tr+2*i+h}, v{Lr+4*i+2*h}, v{Lr+4*i+2*h+1}")
        for i in BL:
            for h in range(2):
                a(f"v_lshlrev_b32 v{Lr+4*i+2*h}, 16, v{Tr+2*i+h}\nv_and_b32 v{Lr+4*i+2*h+1}, s43, v{Tr+2*i+h}")
    if mimic: round_bf16()
    for i in BL:
        for t in range(4):
            a(f"v_mul_f32 v{Lr+4*i+t}, s41, v{Lr+4*i+t}")
    if mimic: round_bf16()
    for i in BL:
        for t in range(4):
            mk = (M_P0 if i == 0 else M_P) + 2*t if t < 2 else M_C + 2*(t-2)
            a(f"v_cndmask_b32 v{Lr+4*i+t}, v{T+2}, v{Lr+4*i+t}, s[{mk}:{mk+1}]")
    def allreduce(R, op):
        for swap in ("v_permlane32_swap_b32", "v_permlane16_swap_b32"):
            for i in BL: a(f"v_mov_b32 v{Tr+i}, v{R+i}")
            for i in BL: a(f"{swap} v{R+i}, v{Tr+i}")
            for i in BL: a(f"{op} v{R+i}, v{R+i}, v{Tr+i}")
    for i in BL: a(f"v_max_f32 v{Mx+i}, v{Lr+4*i}, v{Lr+4*i+1}")
    for i in BL: a(f"v_max3_f32 v{Mx+i}, v{Mx+i}, v{Lr+4*i+2}, v{Lr+4*i+3}")
    allreduce(Mx, "v_max_f32")
    for i in BL: a(f"v_mul_f32 v{Mx+i}, s42, v{Mx+i}")
    for i in BL:
        for t in range(4):
            a(f"v_fma_f32 v{Lr+4*i+t}, v{Lr+4*i+t}, s42, -v{Mx+i}")
    for i in BL:
        for t in range(4):
            a(f"v_exp_f32 v{Lr+4*i+t}, v{Lr+4*i+t}")
    for i in BL: a(f"v_add_f32 v{Sm+i}, v{Lr+4*i}, v{Lr+4*i+1}\nv_add_f32 v{Tr+i}, v{Lr+4*i+2}, v{Lr+4*i+3}")
    for i in BL: a(f"v_add_f32 v{Sm+i}, v{Sm+i}, v{Tr+i}")
    allreduce(Sm, "v_add_f32")
    for i in BL: a(f"v_rcp_f32 v{Sm+i}, v{Sm+i}")
    for i in BL:
        for t in range(4):
            a(f"v_mul_f32 v{Lr+4*i+t}, v{Lr+4*i+t}, v{Sm+i}")
    for i in BL:
        for h in range(2):
            a(f"v_cvt_pk_bf16_f32 v{Tr+2*i+h}, v{Lr+4*i+2*h}, v{Lr+4*i+2*h+1}")
    for i in BL:
        for h in range(2):
            a(f"v_perm_b32 v{PP+4*i+2*h}, v{Tr+2*i+h}, v{Tr+2*i+h}, v{SELA}\nv_perm_b32 v{PP+4*i+2*h+1}, v{Tr+2*i+h}, v{Tr+2*i+h}, v{SELB}")
    for i in BL:
        for b in range(2):
            a(f"v_mfma_f32_16x16x32_bf16 {vr(OO+8*i+4*b, 4)}, {vr(VP+10*b+2*i, 4)}, {vr(PP+4*i, 4)}, 0")
    a(f"s_lshl_b32 s41, s{S_RB}, 3\ns_lshr_b32 s42, s{S_WAVE}, 1\ns_lshl_b32 s43, s42, 2\ns_add_u32 s41, s41, s43\ns_lshl_b32 s41, s41, 5")
    a(f"s_lshl_b32 s43, s{S_CT}, 1\ns_and_b32 s44, s{S_WAVE}, 1\ns_add_u32 s43, s43, s44\ns_add_u32 s41, s41, s43\ns_lshl_b32 s41, s41, 10\ns_add_u32 s41, s41, {WS_O + 3*32768}")
    for i in BL:
        cvt4(Lr+4*i, OO+8*i); cvt4(Lr+4*i+2, OO+8*i+4)
        a(f"buffer_store_dwordx4 {vr(Lr+4*i, 4)}, v{L16}, {srd(R_WS)}, s41 offen sc1")
        if i: a("s_sub_u32 s41, s41, 32768")
    stamp(3)
    a(f"s_lshl_b32 s41, s{S_RB}, 8\ns_lshl_b32 s44, s42, 7\ns_add_u32 s41, s41, s44\ns_lshl_b32 s43, s43, 2\ns_add_u32 s41, s41, s43\ns_add_u32 s41, s41, {WS_F}")
    a(f"v_mov_b32 v{T+2}, 0\nv_mov_b32 v{T+3}, 1\nv_and_b32 v{T+4}, 31, v{LN}\nv_lshlrev_b32 v{T+4}, 2, v{T+4}")
    A2, WF, OR = 0, 32, 64
    a("s_waitcnt vmcnt(0)\ns_mov_b64 exec, 1")
    a(f"buffer_store_dword v{T+3}, v{T+2}, {srd(R_WS)}, s41 offen sc1\ns_mov_b64 exec, -1")
    stamp(4)
    for i in range(32): a(f"v_mov_b32 v{A2+i}, 0")
    a(f"s_lshl_b32 s41, s{S_RB2}, 8\ns_add_u32 s41, s41, s44\ns_add_u32 s41, s41, {WS_F}\ns_mov_b32 s47, {SPIN}")
    a(f"s_lshl_b32 s45, s{S_RB2}, 3\ns_lshl_b32 s46, s{S_WAVE}, 1\ns_add_u32 s45, s45, s46\ns_lshl_b32 s45, s45, 15\ns_add_u32 s45, s45, {WS_O}")
    a(f"v_add_u32 v{T+5}, 0x8000, v{L16}\ns_lshl_b32 s46, s{S_H0}, 10")
    a("s_barrier")
    def wo_reads(Fr, pos):
        return [f"ds_read_b64_tr_b16 {vr(Fr+4*nb+2*b, 2)}, v{AWO+nb} offset:{pos*4096+b*2048}" for nb in range(4) for b in range(2)]
    for r in wo_reads(WF, 0): a(r)
    a.label("L_opoll")
    a(f"buffer_load_dword v{T+6}, v{T+4}, {srd(R_WS)}, s41 offen sc1\ns_waitcnt vmcnt(0)\nv_cmp_ne_u32 vcc, 1, v{T+6}")
    a(f"s_cmp_eq_u64 vcc, 0\ns_cbranch_scc1 L_oready\ns_sub_u32 s47, s47, 1\ns_cmp_lg_u32 s47, 0\ns_cbranch_scc1 L_opoll")
    a.label("L_oready")
    stamp(5)
    def o_loads(p):
        a(f"s_add_u32 s48, s45, s46\nbuffer_load_dwordx4 {vr(OR+8*p, 4)}, v{L16}, {srd(R_WS)}, s48 offen sc1")
        a(f"buffer_load_dwordx4 {vr(OR+8*p+4, 4)}, v{T+5}, {srd(R_WS)}, s48 offen sc1\ns_add_u32 s46, s46, 1024\ns_and_b32 s46, s46, 0x7fff")
    for p in range(8): o_loads(p)
    def g2_iter(last):
        for p in range(8):
            F, G = (WF, WF+16) if p % 2 == 0 else (WF+16, WF)
            rd = [] if (last and p == 7) else wo_reads(G, p + 1)
            a(f"s_waitcnt vmcnt({14 if not last else 14-2*p}) lgkmcnt(0)")
            k = 0
            for b in range(2):
                for nb in (range(4) if b == 0 else range(3, -1, -1)):
                    acc = vr(A2+16*b+4*nb, 4)
                    a(f"v_mfma_f32_16x16x32_bf16 {acc}, {vr(F+4*nb, 4)}, {vr(OR+8*p+4*b, 4)}, {acc}")
                    if k < len(rd): a(rd[k])
                    k += 1
            if not last: o_loads(p)
    a("s_mov_b32 s40, 3")
    a.label("L_g2")
    g2_iter(False)
    for nb in range(4): a(f"v_add_u32 v{AWO+nb}, 0x8000, v{AWO+nb}")
    a("s_sub_u32 s40, s40, 1\ns_cmp_lg_u32 s40, 0\ns_cbranch_scc1 L_g2")
    g2_iter(True)
    stamp(6)
    a(f"v_and_b32 v{T+2}, 15, v{LN}\nv_lshlrev_b32 v{T+2}, 12, v{T+2}\nv_bfe_u32 v{T+3}, v{LN}, 4, 1\nv_lshl_add_u32 v{T+2}, v{T+3}, 5, v{T+2}\nv_lshrrev_b32 v{T+3}, 5, v{LN}\nv_lshl_add_u32 v{T+2}, v{T+3}, 4, v{T+2}")
    a(f"s_lshl_b32 s41, s{S_RB2}, 2\ns_add_u32 s41, s41, s{S_WAVE}\ns_lshl_b32 s41, s41, 17\ns_lshl_b32 s42, s{S_CT2}, 7\ns_add_u32 s41, s41, s42")
    for b in range(2):
        for pr in range(2):
            D = WF + 8*b + 4*pr
            cvt4(D, A2+16*b+8*pr); cvt4(D+2, A2+16*b+8*pr+4)
    for b in range(2):
        for pr in range(2):
            D = WF + 8*b + 4*pr
            a(f"v_permlane16_swap_b32 v{D}, v{D+2}\nv_permlane16_swap_b32 v{D+1}, v{D+3}")
            a(f"buffer_store_dwordx4 {vr(D, 4)}, v{T+2}, {srd(R_OUT)}, s41 offen offset:{64*pr}")
        if b == 0: a("s_add_u32 s41, s41, 0x10000")
    if stamps:
        a("s_waitcnt vmcnt(0)")
        stamp(7)
    dump_stamps(128, 8, S_WAVE, T+2)
    a.label("L_end")
    a("s_endpgm")
    text, added = fix(a.text())
    return text

HEADER = open("concat_heads__sliding_local_dilated__spectral_fnet__prompt.s.ref").read().split("; Override launch")[0] \
    if len(sys.argv) > 1 and sys.argv[1] == "final" else ""

if __name__ == "__main__":
    if len(sys.argv) > 1 and sys.argv[1] == "final":
        open("concat_heads__sliding_local_dilated__spectral_fnet__prompt.s", "w").write(
            wrap(gen(), 256, 512, LDS_TOTAL, header=HEADER))
    else:
        open("k_plain.s", "w").write(wrap(gen(), 256, 512, LDS_TOTAL))
        open("k_stamp.s", "w").write(wrap(gen(stamps=True), 256, 512, LDS_TOTAL))
```

```python
import re
TRANS = ("v_exp_f32", "v_log_f32", "v_rcp_f32", "v_rsq_f32", "v_sqrt_f32", "v_sin_f32", "v_cos_f32")
def regs(tok):
    tok = tok.strip()
    tok = re.sub(r"^-|^abs\(|\)$|^\|", "", tok).rstrip("|")
    m = re.fullmatch(r"([vsa])(\d+)", tok)
    if m: return [(m.group(1), int(m.group(2)))]
    m = re.fullmatch(r"([vsa])\[(\d+):(\d+)\]", tok)
    if m: return [(m.group(1), i) for i in range(int(m.group(2)), int(m.group(3)) + 1)]
    if tok in ("vcc", "vcc_lo", "vcc_hi"): return [("s", "vcc")]
    if tok == "exec": return [("s", "exec")]
    if tok == "m0": return [("s", "m0")]
    return []
def parse(line):
    t = line.split(";")[0].strip()
    if not t or t.endswith(":") or t.startswith("."): return None
    p = t.split(None, 1); op = p[0]
    body = re.sub(r"\s(op_sel|op_sel_hi|neg_lo|neg_hi|quad_perm):\[[0-9,]*\]", "", p[1]) if len(p) > 1 else ""
    ops = [x.strip() for x in body.split(",")] if body else []
    if ops: ops[-1:] = ops[-1].split()
    R = [regs(o) for o in ops]
    d = dict(op=op, w=[], r=[], kind="other", a=[], c=[], data=[], text=t)
    flat = lambda L: [x for l in L for x in l]
    if op.startswith("v_mfma"):
        d.update(kind="mfma", passes=8 if "32x32" in op else 4, w=R[0], a=R[1] + R[2], c=R[3], r=R[1] + R[2] + R[3])
    elif op.startswith("v_permlane"):
        d.update(kind="permlane", w=R[0] + R[1], r=R[0] + R[1])
    elif op.startswith(("v_readfirstlane", "v_readlane")):
        d.update(kind="readlane", w=R[0], r=flat(R[1:]))
    elif op.startswith("v_cmp"):
        d.update(kind="valu", w=R[0], r=flat(R[1:]))
    elif op.startswith("v_"):
        w = R[0]; r = flat(R[1:])
        if "_co_" in op: w = R[0] + R[1]; r = flat(R[2:])
        if op.startswith(("v_fmac", "v_mac")): r = r + R[0]
        d.update(kind="trans" if op.replace("_e32", "").replace("_e64", "") in TRANS else "valu", w=w, r=r, dpp=("row_" in t or "quad_perm" in t))
    elif op.startswith(("buffer_load", "global_load")):
        if " lds" in t: d.update(kind="vmem", r=flat(R) + [("s", "m0")], dma=True)
        else: d.update(kind="vmem", w=R[0], r=flat(R[1:]))
    elif op.startswith("buffer_store") or op.startswith("buffer_atomic"):
        d.update(kind="vmem", r=flat(R), data=R[0] if "x4" in op or "x3" in op else [])
    elif op.startswith("global_store") or op.startswith("global_atomic"):
        d.update(kind="vmem", r=flat(R), data=R[1] if "x4" in op or "x3" in op else [])
    elif op.startswith(("ds_read", "ds_bpermute", "ds_permute", "ds_swizzle", "ds_add_rtn")):
        d.update(kind="ds", w=R[0], r=flat(R[1:]))
    elif op.startswith("ds_"):
        d.update(kind="ds", r=flat(R))
    elif op == "s_nop":
        d.update(kind="nop", n=int(ops[0], 0) + 1)
    elif op.startswith("s_"):
        if op.startswith(("s_cmp", "s_cbranch", "s_branch", "s_waitcnt", "s_barrier", "s_endpgm", "s_setprio", "s_sleep")):
            d.update(kind="salu", r=flat(R))
        else:
            w = R[0] if R else []
            if "saveexec" in op: w = w + [("s", "exec")]
            d.update(kind="salu", w=w, r=flat(R[1:]))
    return d
def need(p, c):
    pw = set(p["w"]); n = 0
    isv = lambda k: k in ("valu", "trans", "permlane", "readlane")
    vw = {x for x in pw if x[0] in "va"}; sw = {x for x in pw if x[0] == "s"}
    cr = set(c["r"]); cw = set(c["w"])
    if p["kind"] == "mfma":
        ps = p["passes"]
        if c["kind"] == "mfma":
            if pw & set(c["a"]): n = max(n, ps + 4)
            cc = set(c["c"])
            if pw & cc and not (p["w"] == c["c"] and p["passes"] == c["passes"]): n = max(n, ps + 2)
            if pw & cw and p["w"] != c["c"]: n = max(n, ps + 2)
        elif pw & (cr | cw): n = max(n, ps + 4)
        if isv(c["kind"]) and set(p["c"]) & cw: n = max(n, ps - 1)
    if isv(p["kind"]):
        if c["kind"] == "mfma" and vw & cr: n = max(n, 2)
        if c["kind"] == "permlane" and vw & cr: n = max(n, 2)
        if c["kind"] == "readlane" and vw & cr: n = max(n, 1)
        if c.get("dpp") and vw & cr: n = max(n, 2)
        if p["kind"] == "trans" and c["kind"] in ("valu", "permlane", "readlane", "trans") and vw & cr: n = max(n, 1)
        if sw and isv(c["kind"]) and sw & cr: n = max(n, 2)
        if sw and c["kind"] == "vmem" and sw & cr: n = max(n, 5)
        if sw and c["kind"] == "salu" and sw & cr: n = max(n, 1)
    if p["kind"] == "salu" and ("s", "m0") in pw and c.get("dma"): n = max(n, 1)
    if p["kind"] == "vmem" and p["data"] and set(p["data"]) & cw: n = max(n, 2)
    return n
def fix(text):
    out = []; hist = []; pos = 0; added = 0
    for line in text.split("\n"):
        d = parse(line)
        if d is None:
            out.append(line); continue
        req = 0
        for (q, p) in hist:
            gap = pos - q - 1
            req = max(req, need(p, d) - gap)
        if req > 0 and d["kind"] != "nop":
            out.append(f"    s_nop {req - 1}"); pos += req; added += 1
        out.append(line)
        if d["kind"] == "nop": pos += d["n"]
        else:
            hist.append((pos, d)); pos += 1
        hist = [(q, p) for (q, p) in hist if pos - q <= 24]
        if d["op"] in ("s_branch", "s_endpgm"): hist = []
    return "\n".join(out), added
```

```python
import sys, struct
from asmlib import *
from hazard import fix

SLOT = 43008; XB = 0; WB = 18432
LDS_B = 131072; LDS_C = 147456; LDS_TOTAL = 163840
WS_O = 0; WS_V = 4 << 20; WS_F = 8 << 20; WS_G = WS_F + 65536; WS_ST = 12 << 20
SPIN = 1 << 20
LF = LDS_C + 15360; F_S, F_Z, F_W, F_X, F_EX, F_T = LF, LF + 4, LF + 8, LF + 12, LF + 16, LF + 32; F_R = LF + 36; F_V = LF + 40; F_O = LF + 44; F_M = LF + 48
LDS_T = LDS_B

def f32(x):
    return "0x%08x" % struct.unpack("<I", struct.pack("<f", x))[0]

S_WAVE, S_XCD, S_LI, S_RB, S_CT, S_SL, S_H0 = 3, 4, 5, 6, 7, 9, 10
S_RB2, S_CT2 = 8, 11
S_DBG = 12
R_X, R_W, R_WO, R_BX, R_OUT, R_WS = 16, 20, 24, 28, 32, 36
S_STAMP = 76

def srd(r): return f"s[{r}:{r+3}]"

def gen(stamps=False, mimic=True, prio=1, rot=True, codepf=True, ysc='sc1 nt', dbgst=False, osc='sc1 nt', c3=True, nw15=10, nwa=22, lprio=0, tprio=2, jx=0, nxg=1, jb=2, js=5, nsg=4, halves=True, epoll=True, ygate=2, late=3, vlate=True, xpol='nt', vgate=True, pk=True, spol='sc1', y64=True, vsleep=8, nob=False, arr2='4x8', opoll='one', osleep=0,
        ks=(7, 7, 7, 7, 8, 9, 10, 10, 10, 10, 10, 10, 10, 10, 10), att2=True):
    a = Asm()
    nstamp = [0]
    sb = [S_STAMP]
    def stamp(i):
        if stamps: a(f"s_memrealtime s[{sb[0]+2*i}:{sb[0]+2*i+1}]")
    def dump_stamps(base, n, cond_reg, vt):
        if not stamps: return
        lab = a.newlabel("nost")
        a(f"s_waitcnt lgkmcnt(0)\ns_cmp_lg_u32 s{cond_reg}, 0\ns_cbranch_scc1 {lab}")
        a(f"s_lshl_b32 s40, s2, 8\ns_add_u32 s40, s40, {WS_ST + base}\nv_mov_b32 v{vt}, 0")
        for i in range(n):
            a(f"v_mov_b32 v{vt+1}, s{sb[0]+2*i}\nbuffer_store_dword v{vt+1}, v{vt}, {srd(R_WS)}, s40 offen offset:{4*i}")
        a.label(lab)

    for r, off in ((R_X, 0), (R_W, 8), (R_BX, 24), (R_WS, 80), (R_WO, 16), (R_OUT, 64), (S_DBG, 72)):
        a(f"s_load_dwordx2 s[{r}:{r+1}], s[0:1], {off}")
    stamp(0)
    if dbgst: a("s_memrealtime s[92:93]\ns_memtime s[94:95]")
    a("s_cmp_ge_u32 s2, 256\ns_cbranch_scc1 L_end")
    a(f"v_lshrrev_b32 v1, 6, v0\nv_and_b32 v2, 63, v0\ns_and_b32 s{S_XCD}, s2, 7\nv_readfirstlane_b32 s{S_WAVE}, v1\ns_lshr_b32 s{S_LI}, s2, 3")
    a(f"s_and_b32 s{S_RB}, s{S_XCD}, 1\ns_lshl_b32 s{S_RB}, s{S_RB}, 3\ns_and_b32 s40, s{S_LI}, 7\ns_add_u32 s{S_RB}, s{S_RB}, s40")
    a(f"s_lshr_b32 s{S_CT}, s{S_XCD}, 1\ns_lshl_b32 s{S_CT}, s{S_CT}, 2\ns_lshr_b32 s40, s{S_LI}, 3\ns_add_u32 s{S_CT}, s{S_CT}, s40")
    for r, n in ((R_X, 0x400000), (R_W, 0x600000), (R_WO, 0x200000), (R_BX, 0x400000), (R_OUT, 0x800000), (R_WS, 0x1000000), (S_DBG, 16)):
        a(f"s_mov_b32 s{r+2}, {hex(n)}\ns_mov_b32 s{r+3}, 0x20000")
    a(f"s_lshr_b32 s{S_SL}, s{S_LI}, 1")
    if arr2 == "8x4":
        a(f"s_mov_b32 s{S_RB2}, s{S_RB}\ns_mov_b32 s{S_CT2}, s{S_CT}")
        a(f"s_lshl_b32 s{S_H0}, s40, 1\ns_add_u32 s{S_H0}, s{S_H0}, s{S_LI}\ns_and_b32 s{S_H0}, s{S_H0}, 7\ns_lshl_b32 s{S_H0}, s{S_H0}, 2")
    elif arr2 == "4x8":
        a(f"s_lshr_b32 s41, s{S_XCD}, 1\ns_lshl_b32 s41, s41, 2\ns_and_b32 s42, s{S_LI}, 3\ns_add_u32 s{S_RB2}, s41, s42")
        a(f"s_and_b32 s41, s{S_XCD}, 1\ns_lshl_b32 s41, s41, 3\ns_lshr_b32 s43, s{S_LI}, 2\ns_add_u32 s{S_CT2}, s41, s43")
        if halves: a(f"s_add_u32 s{S_H0}, s42, s43\ns_and_b32 s{S_H0}, s{S_H0}, 3\ns_lshl_b32 s{S_H0}, s{S_H0}, 2")
        else: a(f"s_lshl_b32 s{S_H0}, s42, 1\ns_add_u32 s{S_H0}, s{S_H0}, s43\ns_and_b32 s{S_H0}, s{S_H0}, 7\ns_lshl_b32 s{S_H0}, s{S_H0}, 2")
    else:
        a(f"s_lshl_b32 s{S_RB2}, s{S_XCD}, 1\ns_and_b32 s42, s{S_LI}, 1\ns_add_u32 s{S_RB2}, s{S_RB2}, s42\ns_mov_b32 s{S_CT2}, s{S_SL}")
        a(f"s_lshl_b32 s{S_H0}, s42, 3\ns_add_u32 s{S_H0}, s{S_H0}, s{S_CT2}\ns_and_b32 s{S_H0}, s{S_H0}, 15\ns_lshl_b32 s{S_H0}, s{S_H0}, 1")
    a(f"s_cmp_lt_u32 s{S_WAVE}, 4\ns_cbranch_scc1 L_compute")

    VX, VW, VXB, VWO = 10, 16, 22, 23
    VF, VG, VH, VC, VS, VNS, VTC, VTS = 24, 28, 60, 64, 72, 80, 88, 104
    VF1 = 232
    S_KX, S_KW, S_LB, S_KO = 44, 45, 46, 53
    a(f"s_sub_u32 s{S_WAVE}, s{S_WAVE}, 4")
    if lprio: a(f"s_setprio {lprio}")
    a("v_lshrrev_b32 v3, 3, v2\nv_and_b32 v4, 7, v2\nv_lshrrev_b32 v5, 4, v2")
    a(f"s_and_b32 s41, s{S_WAVE}, 1\ns_lshl_b32 s42, s41, 2\nv_add_u32 v6, s42, v5\nv_xor_b32 v6, v6, v4\nv_lshlrev_b32 v6, 4, v6")
    a(f"s_lshl_b32 s42, s{S_RB}, 7\ns_lshl_b32 s43, s{S_WAVE}, 3\ns_add_u32 s42, s42, s43\ns_sub_u32 s42, s42, 16")
    a(f"v_add_u32 v7, s42, v3\nv_lshl_add_u32 v{VX+1}, v7, 11, v6")
    a(f"s_cmp_lt_i32 s42, 0\ns_cselect_b32 s43, 0x8000, 0\nv_add_u32 v{VX}, s43, v{VX+1}")
    for n in range(4, 0, -1):
        a(f"v_add_u32 v{VX+n}, {n*65536}, v{VX+1}")
    a(f"v_and_b32 v7, 1, v5\ns_lshl_b32 s42, s41, 1\nv_add_u32 v7, s42, v7\nv_lshlrev_b32 v7, 1, v7\nv_xor_b32 v7, v7, v4\nv_lshlrev_b32 v7, 4, v7")
    a(f"s_lshl_b32 s42, s{S_WAVE}, 3\nv_add_u32 v8, s42, v3\nv_mul_u32_u24 v8, 6144, v8\ns_lshl_b32 s42, s{S_CT}, 7\nv_add3_u32 v{VW}, v7, v8, s42")
    for i in range(1, 6):
        a(f"v_add_u32 v{VW+i}, {(i >> 1)*2048 + (i & 1)*32*6144}, v{VW}")
    a(f"s_lshr_b32 s42, s{S_RB}, 2\ns_lshr_b32 s43, s{S_CT}, 2\ns_add_u32 s42, s42, s43\ns_and_b32 s42, s42, 3")
    if not rot: a("s_mov_b32 s42, 0")
    a(f"s_lshl_b32 s{S_KX}, s42, 9\ns_mul_i32 s{S_KW}, s42, {4*393216}\ns_lshl_b32 s{S_LB}, s{S_WAVE}, 10")

    def dma_group(g):
        sl = g % 3; lab = a.newlabel("x5")
        ops = [(f"s_add_u32 m0, s{S_LB}, {XB+sl*SLOT+4*4096}\ns_cmp_ge_u32 s{S_WAVE}, 2\ns_cbranch_scc1 {lab}\nbuffer_load_dwordx4 v{VX+4}, {srd(R_X)}, s{S_KX} offen lds\n{lab}:", None, g)]
        xs = [(f"s_add_u32 m0, s{S_LB}, {XB+sl*SLOT+n*4096}", f"buffer_load_dwordx4 v{VX+n}, {srd(R_X)}, s{S_KX} offen lds", g) for n in range(4)]
        ws = [(f"s_add_u32 m0, s{S_LB}, {WB+sl*SLOT+(i >> 1)*8192+(i & 1)*4096}", f"buffer_load_dwordx4 v{VW+i}, {srd(R_W)}, s{S_KW} offen lds", g) for i in range(6)]
        ops += xs + ws
        pre, ld, _ = ops[-1]
        ops[-1] = (pre, ld + f"\ns_add_u32 s{S_KX}, s{S_KX}, 128\ns_and_b32 s{S_KX}, s{S_KX}, 2047\ns_add_u32 s{S_KW}, s{S_KW}, 393216"
                   f"\ns_cmp_ge_u32 s{S_KW}, 0x600000\ns_cselect_b32 s{S_KW}, 0, s{S_KW}", g)
        return ops
    q = []
    def emit(text, tag=None):
        for ln in text.split("\n"):
            a(ln)
            if ln.strip().startswith(("buffer_load", "buffer_store", "global_load")):
                t = ln.split(";tag=")[1].strip() if ";tag=" in ln else tag
                if t is not None: q.append(t)
    def wait_for(tag):
        if tag not in q: return 63
        return len(q) - 1 - max(i for i, t in enumerate(q) if t == tag)
    def capture(fn, *args):
        keep = a.lines; a.lines = []
        fn(*args)
        got = [l.strip() for l in a.lines if l.strip()]; a.lines = keep
        groups = []
        for l in got:
            glue = l.startswith(("s_cselect", "s_cbranch", "s_addc", "s_subb")) or (groups and groups[-1][-1].startswith("s_waitcnt"))
            if glue: groups[-1].append(l)
            else: groups.append([l])
        return groups
    def weave(ops, fill):
        slots = [i for i, o in enumerate(ops) if o[1] is not None]
        done = 0
        for i, (pre, ld, g) in enumerate(ops):
            if ld is None:
                emit(pre); continue
            emit(pre)
            upto = len(fill) * (slots.index(i) + 1) // len(slots)
            for grp in fill[done:upto]: emit("\n".join(grp), "o")
            done = upto
            emit(ld, f"D{g}")
        for grp in fill[done:]: emit("\n".join(grp), "o")
    def lds_wait(addr, target, vt):
        lab = a.newlabel("lw")
        a(f"v_mov_b32 v{vt}, {addr}")
        a.label(lab)
        a(f"ds_read_b32 v{vt+1}, v{vt}\ns_waitcnt lgkmcnt(0)\nv_readfirstlane_b32 s40, v{vt+1}\ns_cmp_ge_u32 s40, {target}\ns_cbranch_scc0 {lab}")
    def lds_add(addr, vt):
        a(f"v_mov_b32 v{vt}, {addr}\nv_mov_b32 v{vt+1}, 1\nds_add_u32 v{vt}, v{vt+1}")

    def wo_op(n):
        w = 63 if halves else 127
        return (f"s_add_u32 s47, s{S_KO}, {n}\ns_and_b32 s47, s47, {w}\ns_add_u32 s48, s{S_WAVE}, {n}\ns_and_b32 s48, s48, {127 - w}\ns_or_b32 s47, s47, s48\ns_add_u32 m0, s{S_LB}, {n*1024}\ns_lshl_b32 s47, s47, 14",
                f"buffer_load_dwordx4 v{VWO}, {srd(R_WO)}, s47 offen lds", "W")
    def wo_start(first):
        if first == 42: a(f"s_lshl_b32 s{S_KO}, s{S_H0}, 2\ns_add_u32 s{S_KO}, s{S_KO}, s{S_WAVE}")

    def hi(on):
        if prio == 2: a(f"s_setprio {2 if on else 0}")

    def cosrow(dst, x0, dx, tmp):
        for i in range(8):
            a(f"v_cos_f32 v{tmp+i}, v{x0}")
            if i < 7: a(f"v_add_f32 v{x0}, v{x0}, v{dx}")
        for i in range(4):
            a(f"v_cvt_pk_bf16_f32 v{dst+i}, v{tmp+2*i}, v{tmp+2*i+1}")

    def b1_consts():
        T = 120
        ph8 = 49
        a(f"s_lshl_b32 s{ph8}, s{S_WAVE}, 2")
        a(f"v_and_b32 v{T}, 3, v2\nv_add_u32 v{T}, s{ph8}, v{T}")
        a(f"v_bfe_u32 v{T+1}, v2, 2, 1\nv_cvt_f32_u32 v{T+2}, v{T+1}\nv_mul_f32 v{T+2}, {f32(0.25)}, v{T+2}")
        a(f"v_cmp_eq_u32 vcc, 0, v{T}\nv_lshlrev_b32 v{T+1}, 4, v{T+1}\nv_cndmask_b32 v{T}, v{T}, v{T+1}, vcc\nv_cndmask_b32 v{T+2}, v{T+2}, 0, vcc")
        a(f"v_cvt_f32_u32 v{T}, v{T}\nv_mul_f32 v{T+3}, {f32(1/32)}, v{T}\nv_cvt_f32_u32 v{T+4}, v5\nv_mul_f32 v{T+4}, {f32(8.0)}, v{T+4}")
        a(f"v_fma_f32 v{T+2}, v{T+3}, v{T+4}, v{T+2}")
        cosrow(T+20, T+2, T+3, T+8)
        a("s_mov_b32 s50, 0x00ff00ff\ns_mov_b32 s51, 0x00ff00ff")
        for i in range(4):
            a(f"v_cndmask_b32 v{VF+i}, 0, v{T+20+i}, s[50:51]\nv_cndmask_b32 v{VF1+i}, v{T+20+i}, 0, s[50:51]")
        Q, CP, PH, P0 = T+16, T+17, T+18, T+19
        a(f"v_bfe_u32 v{Q}, v2, 1, 3\nv_and_b32 v{CP}, 1, v2\nv_bfe_u32 v{T}, v2, 4, 1\nv_sub_u32 v{T+1}, v{CP}, v{T}")
        a(f"v_cvt_f32_i32 v{PH}, v{T+1}\nv_mul_f32 v{PH}, {f32(0.25)}, v{PH}")
        a(f"v_mov_b32 v{P0}, s{ph8}")
        a(f"v_lshl_add_u32 v{T+5}, v{Q}, 5, v{P0}")
        a(f"v_cvt_f32_u32 v{T+6}, s{S_XCD}\nv_mul_f32 v{T+6}, {f32(1/2048)}, v{T+6}")
        a("s_mov_b32 s50, -1\ns_mov_b32 s51, 0")
        for j in range(4):
            X0, DX = T+2, T+3
            if j == 0:
                a(f"v_cmp_eq_u32 s[52:53], 0, v{P0}\nv_cmp_eq_u32 vcc, 1, v{T}\ns_and_b64 s[54:55], s[52:53], vcc")
                a(f"v_lshlrev_b32 v{T+1}, 5, v{Q}\nv_subrev_u32 v{T+1}, 112, v{T+1}\nv_cndmask_b32 v{T+1}, v{T+5}, v{T+1}, s[54:55]")
                a(f"v_cvt_f32_u32 v{T+4}, v{CP}\nv_mul_f32 v{T+4}, {f32(0.25)}, v{T+4}\nv_cndmask_b32 v{T+4}, v{PH}, v{T+4}, s[52:53]")
                a(f"v_cvt_f32_i32 v{T+1}, v{T+1}\nv_fma_f32 v{X0}, v{T+1}, v{T+6}, v{T+4}\nv_mul_f32 v{DX}, {f32(1/256)}, v{T+1}")
                a(f"v_lshrrev_b32 v{T+1}, 2, v{Q}\nv_cmp_ne_u32 vcc, v{T+1}, v{T}\ns_and_b64 s[54:55], s[52:53], vcc")
                a(f"v_mov_b32 v{T+4}, {f32(0.25)}\nv_cndmask_b32 v{X0}, v{X0}, v{T+4}, s[54:55]\nv_cndmask_b32 v{DX}, v{DX}, 0, s[54:55]")
                a(f"v_and_b32 v{T+1}, 31, v2\nv_cmp_eq_u32 vcc, 1, v{T+1}\ns_and_b64 s[54:55], s[52:53], vcc")
                a(f"v_cndmask_b32 v{X0}, v{X0}, 0, s[54:55]\nv_cndmask_b32 v{DX}, v{DX}, 0.5, s[54:55]")
            else:
                a(f"v_add_u32 v{T+1}, {j}, v{T+5}\nv_cvt_f32_u32 v{T+1}, v{T+1}\nv_fma_f32 v{X0}, v{T+1}, v{T+6}, v{PH}\nv_mul_f32 v{DX}, {f32(1/256)}, v{T+1}")
            cosrow(T+20, X0, DX, T+8)
            for i in range(4):
                a(f"v_cndmask_b32 v{VG+8*j+i}, 0, v{T+20+i}, s[50:51]\nv_cndmask_b32 v{VG+8*j+4+i}, v{T+20+i}, 0, s[50:51]")

    XF, XA, XP, XD = 120, 152, 184, 200
    def b1_compute():
        a(f"v_bfe_u32 v6, v2, 2, 2\nv_lshl_add_u32 v6, v5, 3, v6\nv_lshlrev_b32 v6, 6, v6\nv_and_b32 v7, 3, v2\nv_lshl_add_u32 v6, v7, 3, v6")
        a(f"v_and_b32 v7, 1, v5\nv_lshl_add_u32 v6, v7, 5, v6\nv_add_u32 v6, {LDS_B}, v6\nv_xor_b32 v7, 32, v6")
        for ch, F_, K in ((0, XF, VF), (1, XP, VF1)):
            for b in range(8):
                for u in range(2):
                    a(f"ds_read_b64_tr_b16 {vr(F_+4*b+2*u, 2)}, v{6+ch} offset:{b*2048+u*256}")
            a("s_waitcnt lgkmcnt(0)")
            for b in range(8):
                a(f"v_mfma_f32_16x16x32_bf16 {vr(XA+4*b, 4)}, {vr(K, 4)}, {vr(F_+4*b, 4)}, {vr(XA+4*b, 4) if ch else 0}")
        for j in range(4):
            for i in range(4):
                a(f"v_cvt_pk_bf16_f32 v{XP+4*j+i}, v{XA+8*i+j}, v{XA+8*i+4+j}")
    def b1_finish():
        hi(True)
        for j in range(4):
            for w in range(2):
                a(f"v_mfma_f32_16x16x32_bf16 {vr(XF+8*j+4*w, 4)}, {vr(XP+4*j, 4)}, {vr(VG+8*j+4*w, 4)}, 0")
        hi(False)
        a(f"v_bfe_u32 v231, v2, 1, 3\nv_lshlrev_b32 v231, 15, v231\nv_and_b32 v8, 1, v2\nv_lshl_add_u32 v231, v8, 11, v231\nv_and_b32 v8, 1, v5\nv_lshl_add_u32 v231, v8, 5, v231\nv_lshrrev_b32 v8, 5, v2\nv_lshl_add_u32 v231, v8, 4, v231")
        a(f"s_lshl_b32 s41, s{S_WAVE}, 20\ns_lshl_b32 s42, s{S_XCD}, 12\ns_add_u32 s41, s41, s42\ns_lshl_b32 s42, s{S_LI}, 6\ns_add_u32 s41, s41, s42\ns_add_u32 s41, s41, {WS_V}")
        for j in range(4):
            for w in range(2):
                for i in range(2):
                    a(f"v_cvt_pk_bf16_f32 v{XD+4*j+2*w+i}, v{XF+8*j+4*w+2*i}, v{XF+8*j+4*w+2*i+1}")
        for j in range(4):
            a(f"v_permlane16_swap_b32 v{XD+4*j}, v{XD+4*j+2}\nv_permlane16_swap_b32 v{XD+4*j+1}, v{XD+4*j+3}")
        a(f"s_mov_b32 s56, s41\ns_and_b32 s57, s{S_LI}, {nsg - 1}")
    def b1_store(js):
        for j in js:
            emit(f"buffer_store_dwordx4 {vr(XD+4*j, 4)}, v231, {srd(R_WS)}, s56 offen {spol} ;tag=S\ns_add_u32 s56, s56, 0x40000")

    VR_, VOP, VZ = 120, 152, 184
    def poll4(load, younger):
        lab = a.newlabel("poll"); done = a.newlabel("pdone")
        a(f"s_mov_b32 s47, {SPIN}\ns_waitcnt vmcnt({younger})")
        a.label(lab)
        a(f"v_and_b32 v128, v124, v125\nv_and_b32 v129, v126, v127\nv_or_b32 v130, v124, v125\nv_or3_b32 v130, v130, v126, v127\nv_and_b32 v128, v128, v129")
        a(f"v_cmp_ne_u32 vcc, 1, v128\nv_cmp_ne_u32 s[48:49], 1, v130\ns_or_b64 vcc, vcc, s[48:49]\ns_cbranch_scc0 {done}")
        a(f"s_sleep {vsleep}\n{load}\ns_sub_u32 s47, s47, 1\ns_cmp_lg_u32 s47, 0\ns_waitcnt vmcnt(0)\ns_cbranch_scc1 {lab}")
        a.label(done)
    GO_LOAD = f"buffer_load_dwordx4 v[124:127], v9, {srd(S_DBG)}, 0 offen sc1 ;tag=G"
    VF_LOAD = f"buffer_load_dwordx4 v[124:127], v9, {srd(R_WS)}, 0 offen sc1 ;tag=P"
    def b2_load():
        a(f"v_and_b32 v6, 15, v2\nv_lshlrev_b32 v6, 4, v6\nv_lshrrev_b32 v7, 5, v2\nv_lshl_add_u32 v6, v7, 8, v6\nv_and_b32 v7, 1, v5\nv_lshl_add_u32 v6, v7, 14, v6")
        a(f"s_lshl_b32 s41, s{S_XCD}, 4\ns_add_u32 s41, s41, s{S_SL}\ns_lshl_b32 s41, s41, 15\ns_lshl_b32 s42, s{S_WAVE}, 9\ns_add_u32 s41, s41, s42\ns_add_u32 s41, s41, {WS_V}")
        for s2l in range(4):
            for c in range(2):
                a(f"buffer_load_dwordx4 {vr(VR_+8*s2l+4*c, 4)}, v6, {srd(R_WS)}, s41 offen offset:{c*2048} sc1 ;tag=V")
            a("s_add_u32 s41, s41, 4096")
    def b2_radix8():
        a("s_mov_b32 s41, 0x05040100\ns_mov_b32 s42, 0x07060302")
        for i in range(8):
            for u in range(4):
                a(f"v_perm_b32 v{VOP+4*i+u}, v{VR_+8*u+4+(i >> 1)}, v{VR_+8*u+(i >> 1)}, s{41+(i & 1)}")
        hi(True)
        for i in range(8):
            a(f"v_mfma_f32_16x16x32_bf16 {vr(VZ+4*i, 4)}, {vr(VH, 4)}, {vr(VOP+4*i, 4)}, 0")
        hi(False)
        a(f"v_and_b32 v10, 15, v2\nv_lshlrev_b32 v10, 4, v10\nv_lshrrev_b32 v11, 5, v2\nv_lshl_add_u32 v10, v11, 8, v10\nv_and_b32 v11, 1, v5\nv_lshl_add_u32 v10, v11, 13, v10")
        a(f"s_lshl_b32 s41, s{S_WAVE}, 9\ns_add_u32 s41, s41, {LDS_B}\nv_add_u32 v10, s41, v10")
        for j in range(4):
            for i in range(4):
                a(f"v_cvt_pk_bf16_f32 v{VOP+4*j+i}, v{VZ+8*i+j}, v{VZ+8*i+4+j}")
    def b2_zwrite():
        for j in range(4):
            a(f"ds_write_b128 v10, {vr(VOP+4*j, 4)} offset:{j*2048}")
    S_T, S_REAL, S_PASS = 50, 51, 52
    VZA, VYA, VYM, VNB = 224, 225, 226, 227
    def b2_row_setup():
        a(f"s_lshl_b32 s41, s{S_XCD}, 4\ns_add_u32 s41, s41, s{S_SL}\ns_lshr_b32 s42, s41, 3\ns_and_b32 s43, s41, 7")
        a(f"s_lshl_b32 s47, s43, 5\ns_add_u32 s48, s47, s42\ns_sub_u32 s47, s47, 112\ns_cmp_ge_u32 s41, 4\ns_cselect_b32 s47, s47, s48\ns_cmp_ge_u32 s41, 8\ns_cselect_b32 s48, s48, s47")
        a(f"s_and_b32 s43, s{S_LI}, 1\ns_lshl_b32 s47, s43, 2\ns_add_u32 s47, s47, s{S_WAVE}\ns_lshl_b32 s47, s47, 8\ns_add_u32 s{S_T}, s48, s47")
        a(f"s_lshl_b32 s47, s43, 7\ns_lshl_b32 s48, s{S_WAVE}, 8\ns_add_u32 s47, s47, s48\ns_cmp_eq_u32 s41, 0\ns_cselect_b32 s{S_T}, s47, s{S_T}")
        a(f"s_cmp_eq_u32 s{S_T}, 0\ns_cselect_b32 s{S_REAL}, 1, 0\ns_mov_b32 s{S_PASS}, 0")
        a(f"v_lshrrev_b32 v{VZA}, 5, v2\nv_bfe_u32 v220, v2, 2, 2\nv_lshl_add_u32 v{VZA}, v{VZA}, 2, v220\nv_lshlrev_b32 v{VZA}, 6, v{VZA}")
        a(f"v_and_b32 v220, 1, v5\nv_lshl_add_u32 v{VZA}, v220, 5, v{VZA}\nv_and_b32 v220, 3, v2\nv_lshl_add_u32 v{VZA}, v220, 3, v{VZA}")
        a(f"s_lshl_b32 s41, s{S_WAVE}, 12\ns_add_u32 s41, s41, {LDS_B}\nv_add_u32 v{VZA}, s41, v{VZA}")
        a(f"v_and_b32 v220, 4, v2\nv_lshlrev_b32 v220, 2, v220\nv_lshrrev_b32 v221, 1, v2\nv_and_b32 v221, 12, v221\nv_and_b32 v222, 3, v2\nv_or_b32 v220, v220, v221\nv_or_b32 v220, v220, v222")
        a(f"v_and_b32 v221, 32, v2\nv_lshl_add_u32 v221, v220, 6, v221\nv_add_u32 v{VYA}, 2048, v221\nv_sub_u32 v{VYM}, 4064, v221")
        if y64:
            a(f"v_and_b32 v222, 1, v2\nv_mul_u32_u24 v221, 48, v222\nv_add_u32 v{VYA+4}, 64, v{VYA}\nv_sub_u32 v{VYA+4}, v{VYA+4}, v221\nv_sub_u32 v{VYA}, v{VYA}, v221")
            a(f"v_mul_u32_u24 v221, 80, v222\nv_subrev_u32 v{VYM+4}, 64, v{VYM}\nv_add_u32 v{VYM+4}, v{VYM+4}, v221\nv_add_u32 v{VYM}, v{VYM}, v221")
        a(f"v_add_u32 v220, 1, v220\nv_and_b32 v221, 12, v220\nv_lshlrev_b32 v221, 1, v221\nv_lshrrev_b32 v222, 2, v220\nv_and_b32 v222, 4, v222\nv_and_b32 v220, 3, v220\nv_or_b32 v220, v220, v221\nv_or_b32 v220, v220, v222")
        a(f"v_add_u32 v221, 32, v2\nv_cmp_gt_u32 vcc, 32, v2\nv_cndmask_b32 v220, v220, v221, vcc\nv_lshlrev_b32 v{VNB}, 2, v220")
    def b2_row():
        UR, UI, DR, DI, E, Y, O = 120, 128, 136, 152, 168, 184, 200
        for c, U in ((0, UR), (1, UI)):
            for st in range(2):
                for u in range(2):
                    a(f"ds_read_b64_tr_b16 {vr(U+4*st+2*u, 2)}, v{VZA} offset:{c*2048+st*1024+u*512}")
        lab = a.newlabel("cplx")
        a(f"s_waitcnt lgkmcnt(0)\ns_cmp_eq_u32 s{S_REAL}, 0\ns_cbranch_scc1 {lab}")
        for i in range(8): a(f"v_mov_b32 v{UI+i}, 0")
        a("s_nop 1")
        a.label(lab)
        M = "v_mfma_f32_32x32x16_bf16"
        a(f"{M} {vr(DR,16)}, {vr(UR,4)}, {vr(VC,4)}, 0\n{M} {vr(DI,16)}, {vr(UI,4)}, {vr(VC,4)}, 0")
        for D, U, K in ((DR, UR+4, VC+4), (DI, UI+4, VC+4), (DR, UI, VS), (DI, UR, VNS), (DR, UI+4, VS+4), (DI, UR+4, VNS+4)):
            a(f"{M} {vr(D,16)}, {vr(U,4)}, {vr(K,4)}, {vr(D,16)}")
        for r in range(16):
            a(f"v_mul_f32 v{Y+r}, v{DR+r}, v{VTC+r}\nv_mul_f32 v{O+r}, v{DI+r}, v{VTC+r}")
            a(f"v_fmac_f32 v{Y+r}, v{DI+r}, v{VTS+r}\nv_fma_f32 v{O+r}, -v{DR+r}, v{VTS+r}, v{O+r}")
        for i in range(8):
            a(f"v_cvt_pk_bf16_f32 v{E+i}, v{Y+2*i}, v{Y+2*i+1}\nv_cvt_pk_bf16_f32 v{E+8+i}, v{O+2*i}, v{O+2*i+1}")
        a(f"{M} {vr(DR,16)}, {vr(E,4)}, {vr(VC,4)}, 0")
        for A_, K in ((E+4, VC+4), (E+8, VS), (E+12, VS+4)):
            a(f"{M} {vr(DR,16)}, {vr(A_,4)}, {vr(K,4)}, {vr(DR,16)}")
        a(f"s_lshl_b32 s41, s{S_T}, 12\ns_sub_u32 s42, 2048, s{S_T}\ns_lshl_b32 s42, s42, 12")
        a(f"ds_bpermute_b32 v{DI}, v{VNB}, v{DR}")
        for i in range(8):
            a(f"v_cvt_pk_bf16_f32 v{Y+i}, v{DR+2*i}, v{DR+2*i+1}")
        def pair_store(R, VA, sreg):
            if y64:
                for i in range(4):
                    a(f"v_cndmask_b32 v{UR+i}, v{R+4+i}, v{R+i}, s[56:57]")
                for i in range(4):
                    a(f"v_mov_b32_dpp v{UI+i}, v{UR+i} quad_perm:[1,0,3,2] row_mask:0xf bank_mask:0xf")
                for i in range(4):
                    a(f"v_cndmask_b32 v{R+i}, v{R+i}, v{UI+i}, s[56:57]\nv_cndmask_b32 v{R+4+i}, v{UI+i}, v{R+4+i}, s[56:57]")
                a(f"buffer_store_dwordx4 {vr(R,4)}, v{VA}, {srd(R_OUT)}, s{sreg} offen {ysc}\nbuffer_store_dwordx4 {vr(R+4,4)}, v{VA+4}, {srd(R_OUT)}, s{sreg} offen {ysc}")
            else:
                a(f"buffer_store_dwordx4 {vr(R,4)}, v{VA}, {srd(R_OUT)}, s{sreg} offen {ysc}\nbuffer_store_dwordx4 {vr(R+4,4)}, v{VA}, {srd(R_OUT)}, s{sreg} offen offset:16 {ysc}")
        if ygate: lds_wait(F_O, 256, 216)
        a("s_mov_b32 s56, 0xaaaaaaaa\ns_mov_b32 s57, 0xaaaaaaaa")
        pair_store(Y, VYA, 41)
        lab2 = a.newlabel("nomir")
        a(f"s_waitcnt lgkmcnt(0)\ns_cmp_lg_u32 s{S_REAL}, 0\ns_cbranch_scc1 {lab2}")
        a(f"v_cvt_pk_bf16_f32 v{O}, v{DI}, v{DR+15}")
        for i in range(1, 8):
            a(f"v_cvt_pk_bf16_f32 v{O+i}, v{DR+16-2*i}, v{DR+15-2*i}")
        pair_store(O, VYM, 42)
        a.label(lab2)

    a("s_waitcnt lgkmcnt(0)")
    if stamps: a(f"s_mov_b32 s58, s{S_STAMP}")
    sb[0] = 58
    stamp(1)
    def x_tile():
        a(f"v_lshrrev_b32 v7, 5, v2\nv_lshlrev_b32 v7, 1, v7\nv_and_b32 v8, 3, v2\nv_xor_b32 v7, v7, v8\nv_lshlrev_b32 v7, 4, v7\nv_lshrrev_b32 v8, 2, v2\nv_lshl_add_u32 v{VXB}, v8, 17, v7")
        a(f"s_lshl_b32 s41, s{S_XCD}, 11\ns_lshl_b32 s42, s{S_LI}, 6\ns_add_u32 s41, s41, s42\ns_lshl_b32 s42, s{S_WAVE}, 15\ns_add_u32 s41, s41, s42\ns_lshl_b32 s43, s{S_WAVE}, 12")
        for i in range(4):
            emit(f"s_add_u32 m0, s43, {LDS_B+i*1024}\ns_add_u32 s42, s41, {(i & 1)*0x200000 + (i >> 1)*16384}\nbuffer_load_dwordx4 v{VXB}, {srd(R_BX)}, s42 offen {xpol} lds", "X")
    def const_reads():
        a(f"v_lshlrev_b32 v6, 4, v2\nv_add_u32 v6, {LDS_C}, v6")
        for i in range(15):
            a(f"ds_read_b128 {vr(VH+4*i, 4)}, v6 offset:{i*1024}")
        a(f"v_lshlrev_b32 v7, 1, v5\nv_xor_b32 v7, v7, v4\nv_lshlrev_b32 v7, 4, v7\nv_lshl_add_u32 v7, v3, 11, v7\ns_lshl_b32 s41, s{S_CT2}, 7\nv_add_u32 v{VWO}, s41, v7")
    stream = [op for g in range(16) for op in dma_group(g)]
    def cut(j):
        k = ks[j] if j < len(ks) else 0
        p = 11 * (j + 1) + (k + 1 + (k > 10) if k else 0)
        return min(p, len(stream))
    wo_list = [42 + 4*i for i in range(21)] + [126] + [4*i for i in range(10)] + [40]
    def wo_run(lo, hi_):
        for i in range(lo, hi_):
            n_ = wo_list[i]
            if n_ in (42, 0): wo_start(n_)
            if n_ in (126, 40):
                lab = a.newlabel("wox")
                a(f"s_cmp_ge_u32 s{S_WAVE}, 2\ns_cbranch_scc1 {lab}")
                a("\n".join(wo_op(n_)[:2]))
                a.label(lab)
            else: weave([wo_op(n_)], [])
    pos = 0
    if js is None: js = jb + 1
    assert jx + nxg + 1 < jb or (jx + nxg + 1 == jb and ks[jx + nxg - 1] < 10)
    jrow = 2 if jb > 3 else jb + 2
    jg = 3 if jb > 5 else jb + 2
    for j in range(16):
        fill = capture(b1_consts) if j == 0 else capture(const_reads) if j == 1 else capture(b2_row_setup) if j == jrow else []
        if not nob and j == jb: fill = capture(b1_compute)
        if not nob and j == jb + 1: fill = capture(b1_finish)
        if fill and jb <= j <= jb + 1 and tprio: a(f"s_setprio {tprio}")
        if j == 15:
            wo_run(0, nw15)
        if not nob and max(js + 3, jg + 3) <= j < js + nsg + 3:
            lab = a.newlabel("novf")
            first = j == max(js + 3, jg + 3)
            a(f"s_lshl_b32 s41, s{S_WAVE}, 4\ns_add_u32 s41, s41, s57\n" + (f"s_cmp_gt_u32 s41, {j - js - 3}" if first else f"s_cmp_lg_u32 s41, {j - js - 3}") + f"\ns_cbranch_scc1 {lab}")
            a(f"s_lshr_b32 s41, s2, 3\ns_lshl_b32 s41, s41, 7\ns_and_b32 s42, s2, 7\ns_lshl_b32 s42, s42, 2\ns_add_u32 s41, s41, s42\ns_add_u32 s41, s41, {WS_G}")
            a(f"v_mov_b32 v6, 0\nv_mov_b32 v7, 1\ns_mov_b64 exec, 1\nbuffer_store_dword v7, v6, {srd(R_WS)}, s41 offen sc1\ns_mov_b64 exec, -1")
            a.label(lab)
        ops = stream[pos:cut(j)]; pos = cut(j)
        if j == 0:
            weave(ops[:6], []); weave(ops[6:], fill)
        else: weave(ops, fill)
        if fill and jb <= j <= jb + 1 and tprio: a("s_setprio 0")
        if jx <= j < jx + nxg:
            lab = a.newlabel("nox"); keep = list(q)
            a(f"s_and_b32 s41, s{S_LI}, {nxg - 1}\ns_cmp_lg_u32 s41, {j - jx}\ns_cbranch_scc1 {lab}")
            if not nob: x_tile()
            a.label(lab); q[:] = keep
        if not nob and js <= j < js + nsg:
            lab = a.newlabel("nos"); keep = list(q)
            a(f"s_cmp_lg_u32 s57, {j - js}\ns_cbranch_scc1 {lab}")
            b1_store((0, 1, 2, 3))
            a.label(lab); q[:] = keep
        if j == jg: emit(f"v_mov_b32 v9, 0\n{GO_LOAD}")
        if j == jg + 2: poll4(GO_LOAD, wait_for("G"))
        w = wait_for(f"D{j}")
        a(f"s_waitcnt vmcnt({w})" + (" lgkmcnt(0)" if j == jb - 1 else "") + "\ns_barrier")
        stamp(2 + j)
    wo_run(nw15, nwa)
    lab = a.newlabel("exw")
    a(f"v_mov_b32 v216, {F_EX}\nv_lshrrev_b32 v9, 1, v2\nv_lshlrev_b32 v9, 7, v9\nv_and_b32 v7, 1, v2\nv_lshl_add_u32 v9, v7, 4, v9\nv_add_u32 v9, {WS_G}, v9")
    a.label(lab)
    a(f"ds_read_b128 v[220:223], v216\ns_waitcnt lgkmcnt(0)\nv_and_b32 v220, v220, v221\nv_and_b32 v222, v222, v223\nv_and_b32 v220, v220, v222\nv_readfirstlane_b32 s40, v220\ns_cmp_eq_u32 s40, 0\ns_cbranch_scc1 {lab}")
    stamp(18)
    if not nob: a(VF_LOAD)
    wo_run(nwa, len(wo_list))
    if not nob:
        lat = a.newlabel("vlate"); join = a.newlabel("vjoin"); oth = a.newlabel("voth")
        a(f"s_waitcnt vmcnt({len(wo_list) - nwa - (2 if nwa <= 21 else 1)})\nv_and_b32 v128, v124, v125\nv_and_b32 v129, v126, v127\nv_and_b32 v128, v128, v129\nv_cmp_ne_u32 vcc, 1, v128\ns_cmp_eq_u64 vcc, 0\ns_cbranch_scc0 {lat}")
        lds_add(F_R, 216)
        if late == 2: lds_wait(F_M, 256, 216)
        b2_load()
        a("s_waitcnt vmcnt(8)")
        lds_add(F_W, 216)
        a(f"s_branch {join}")
        a.label(lat)
        a("s_waitcnt vmcnt(0)")
        lds_add(F_W, 216)
        a(f"s_cmp_lg_u32 s{S_WAVE}, 0\ns_cbranch_scc1 {oth}")
        poll4(VF_LOAD, 0)
        lds_add(F_R, 216)
        a.label(oth)
        lds_wait(F_R, 64, 216)
        b2_load()
        a.label(join)
        stamp(19)
        a("s_waitcnt vmcnt(0)")
        b2_radix8(); b2_zwrite()
        lds_add(F_Z, 216)
    if nob:
        a("s_waitcnt vmcnt(0)")
        lds_add(F_W, 216)
        stamp(19)
        a("s_branch L_ldone")
    lds_wait(F_Z, 256, 216)
    a.label("L_row")
    b2_row()
    a(f"s_cmp_lg_u32 s{S_PASS}, 0\ns_cbranch_scc1 L_ldone")
    stamp(20)
    a(f"s_cmp_eq_u32 s{S_REAL}, 0\ns_cbranch_scc1 L_ldone")
    a(f"s_mov_b32 s{S_PASS}, 1\ns_movk_i32 s{S_T}, 1024\nv_add_u32 v{VZA}, 2048, v{VZA}\ns_branch L_row")
    a.label("L_ldone")
    dump_stamps(0, 21, S_WAVE, 120)
    sb[0] = S_STAMP
    a("s_endpgm")

    a.label("L_compute")
    ACC, FA, FB, AX, AH, AW = 0, 104, 148, 192, 198, 204
    LN, L16, SELA, SELB = 210, 211, 212, 213
    T = 214
    a(f"v_mov_b32 v{LN}, v2\nv_lshlrev_b32 v{L16}, 4, v2")
    if codepf:
        a(f"s_getpc_b64 s[50:51]\ns_and_b32 s50, s50, 0xffffff00\ns_sub_u32 s50, s50, CODE_BASE_OFF\ns_subb_u32 s51, s51, 0")
        a(f"s_lshl_b32 s41, s{S_LI}, 2\ns_add_u32 s41, s41, s{S_WAVE}\ns_lshl_b32 s41, s41, 8\ns_min_u32 s41, s41, CODE_LAST\nv_and_b32 v3, 1, v2\nv_lshlrev_b32 v3, 7, v3\nv_add_u32 v3, s41, v3")
        a(f"global_load_dword v{T+12}, v3, s[50:51]")
    a(f"v_and_b32 v44, 15, v2\nv_lshlrev_b32 v44, 2, v44\nv_add_u32 v44, {LF}, v44\nv_mov_b32 v45, 0\nds_write_b32 v44, v45")
    a("s_waitcnt lgkmcnt(0)")
    if c3:
        a(f"s_and_b32 s41, s{S_XCD}, 2\ns_or_b32 s41, s41, s{S_WAVE}\ns_cmp_lg_u32 s41, 0\ns_cbranch_scc1 L_noc3\ns_cmp_ge_u32 s{S_LI}, 24\ns_cbranch_scc1 L_noc3")
        a(f"s_and_b32 s41, s{S_XCD}, 1\ns_lshl_b32 s41, s41, 1\ns_lshr_b32 s42, s{S_XCD}, 1\ns_add_u32 s41, s41, s42\ns_and_b32 s41, s41, 3\ns_mul_i32 s41, s41, 768")
        a(f"s_lshl_b32 s43, s{S_LI}, 6\ns_add_u32 s41, s41, s43\nv_add_u32 v3, s41, v2\nv_subrev_u32 v4, 3072, v3\nv_min_u32 v3, v3, v4\nv_lshlrev_b32 v3, 11, v3")
        a(f"s_lshl_b32 s42, s42, 9\ns_add_u32 s42, s42, 384\nbuffer_load_dword v{T+13}, v3, {srd(R_W)}, s42 offen")
        a.label("L_noc3")
    a(f"s_cmp_lg_u32 s2, 0\ns_cbranch_scc1 L_nozero")
    a(f"v_mov_b32 v4, 0\nv_mov_b32 v5, 0\nv_mov_b32 v6, 0\nv_mov_b32 v7, 0\nv_lshlrev_b32 v3, 7, v2\ns_lshl_b32 s41, s{S_WAVE}, 13\ns_add_u32 s41, s41, {WS_F}")
    a(f"buffer_store_dwordx4 v[4:7], v3, {srd(R_WS)}, s41 offen sc1")
    a(f"v_lshrrev_b32 v3, 1, v2\nv_lshlrev_b32 v3, 7, v3\nv_and_b32 v8, 1, v2\nv_lshl_add_u32 v3, v8, 4, v3\ns_mov_b32 s41, {WS_G}")
    a(f"buffer_store_dwordx4 v[4:7], v3, {srd(R_WS)}, s41 offen sc1\ns_nop 1")
    a.label("L_nozero")
    a(f"v_and_b32 v3, 4, v2\nv_lshlrev_b32 v3, 2, v3\nv_lshrrev_b32 v4, 1, v2\nv_and_b32 v4, 12, v4\nv_and_b32 v5, 3, v2\nv_or_b32 v3, v3, v4\nv_or_b32 v3, v3, v5")
    a(f"s_mov_b32 s41, {f32(1/32)}\ns_cmp_ge_u32 s{S_WAVE}, 2\ns_cselect_b32 s41, {f32(1/1024)}, s41\ns_and_b32 s42, s{S_WAVE}, 1\ns_cselect_b32 s42, {f32(-0.25)}, 0")
    a(f"v_cvt_f32_u32 v3, v3\nv_mul_f32 v3, s41, v3\nv_lshrrev_b32 v4, 5, v2\nv_lshlrev_b32 v4, 2, v4\nv_cvt_f32_u32 v4, v4\nv_mov_b32 v5, s42\nv_fma_f32 v4, v3, v4, v5")
    for i in range(16):
        a(f"v_fmamk_f32 v{8+i}, v3, {f32(8*(i >> 2) + (i & 3))}, v4")
    for i in range(16):
        a(f"v_cos_f32 v{8+i}, v{8+i}")
    a(f"v_add_u32 v6, {LDS_C}, v{L16}\ns_cmp_ge_u32 s{S_WAVE}, 2\ns_cbranch_scc1 L_tw")
    for i in range(8):
        a(f"v_cvt_pk_bf16_f32 v{24+i}, v{8+2*i}, v{9+2*i}")
    a(f"s_cmp_eq_u32 s{S_WAVE}, 0\ns_cbranch_scc1 L_cc")
    for i in range(8):
        a(f"v_xor_b32 v{32+i}, 0x80008000, v{24+i}")
    a(f"ds_write_b128 v6, v[24:27] offset:3072\nds_write_b128 v6, v[28:31] offset:4096\nds_write_b128 v6, v[32:35] offset:5120\nds_write_b128 v6, v[36:39] offset:6144\ns_branch L_cdone")
    a.label("L_cc")
    a(f"ds_write_b128 v6, v[24:27] offset:1024\nds_write_b128 v6, v[28:31] offset:2048")
    a(f"v_bfe_u32 v8, v2, 1, 2\nv_and_b32 v9, 1, v2\ns_and_b32 s41, s{S_LI}, 1\ns_lshl_b32 s42, s41, 2\nv_add_u32 v10, s42, v8\nv_cvt_f32_u32 v10, v10\nv_mul_f32 v10, {f32(0.125)}, v10")
    a(f"v_cvt_f32_u32 v11, v9\nv_mul_f32 v11, {f32(0.25)}, v11\nv_add_f32 v12, {f32(-0.25)}, v11")
    a(f"v_lshrrev_b32 v13, 5, v2\nv_bfe_u32 v14, v2, 3, 1\nv_cmp_eq_u32 vcc, v13, v14\nv_cndmask_b32 v13, 0, 1.0, vcc\nv_mov_b32 v14, v13")
    a(f"s_lshl_b32 s42, s{S_XCD}, 4\ns_add_u32 s42, s42, s{S_SL}\ns_cmp_lg_u32 s42, 0\ns_cbranch_scc1 L_hgen")
    a(f"s_cmp_eq_u32 s41, 0\ns_cbranch_scc0 L_h1")
    a(f"v_mov_b32 v14, 0\nv_and_b32 v15, 7, v2\nv_cmp_eq_u32 vcc, 1, v15\nv_cndmask_b32 v10, v10, 0.5, vcc\nv_cndmask_b32 v11, v11, 0, vcc\ns_branch L_hgen")
    a.label("L_h1")
    a(f"v_mov_b32 v13, 0\nv_mov_b32 v12, v11\nv_lshl_add_u32 v15, v8, 1, 1\nv_cvt_f32_u32 v10, v15\nv_mul_f32 v10, {f32(1/16)}, v10")
    a.label("L_hgen")
    a(f"v_bfe_u32 v15, v2, 4, 1\nv_lshlrev_b32 v15, 2, v15\nv_cvt_f32_u32 v15, v15\nv_fmac_f32 v11, v10, v15\nv_fmac_f32 v12, v10, v15")
    for i in range(4):
        a(f"v_cos_f32 v16, v11\nv_cos_f32 v17, v12\nv_add_f32 v11, v11, v10\nv_add_f32 v12, v12, v10\nv_mul_f32 v16, v16, v13\nv_mul_f32 v17, v17, v14\nv_cvt_pk_bf16_f32 v{24+32+i - 32 + 16}, v16, v17")
    a("ds_write_b128 v6, v[40:43]\ns_branch L_cdone")
    a.label("L_tw")
    a(f"s_sub_u32 s41, s{S_WAVE}, 2\ns_lshl_b32 s41, s41, 12\nv_add_u32 v6, s41, v6")
    for i in range(4):
        a(f"ds_write_b128 v6, {vr(8+4*i, 4)} offset:{7168+i*1024}")
    a.label("L_cdone")
    a(f"v_and_b32 v{T}, 15, v{LN}\nv_lshrrev_b32 v{T+1}, 4, v{LN}")
    a(f"v_lshrrev_b32 v{T+2}, 1, v{T}\nv_xor_b32 v{T+2}, v{T+2}, v{T+1}\nv_lshlrev_b32 v{T+2}, 4, v{T+2}\nv_lshl_add_u32 v{T+2}, v{T}, 7, v{T+2}\nv_xor_b32 v{T+3}, 64, v{T+2}")
    a(f"s_lshr_b32 s41, s{S_WAVE}, 1\ns_lshl_b32 s41, s41, 13\ns_add_u32 s41, s41, 2048")
    for sl in range(3):
        for kk in range(2):
            a(f"v_add_u32 v{AH+2*sl+kk}, {XB+sl*SLOT}, v{T+2+kk}\nv_add_u32 v{AX+2*sl+kk}, s41, v{AH+2*sl+kk}")
    a(f"v_lshrrev_b32 v{T+4}, 2, v{T}\nv_and_b32 v{T+5}, 3, v{T}")
    a(f"v_lshl_add_u32 v{T+6}, v{T+1}, 3, v{T+4}\nv_lshlrev_b32 v{T+6}, 7, v{T+6}")
    a(f"v_lshrrev_b32 v{T+7}, 1, v{T+4}\nv_and_b32 v{T+8}, 1, v{T+1}\nv_lshl_add_u32 v{T+7}, v{T+8}, 1, v{T+7}\nv_lshlrev_b32 v{T+7}, 1, v{T+7}")
    a(f"s_and_b32 s41, s{S_WAVE}, 1\ns_lshl_b32 s41, s41, 2\nv_lshrrev_b32 v{T+8}, 1, v{T+5}\nv_add_u32 v{T+9}, s41, v{T+8}")
    a(f"v_xor_b32 v{T+9}, v{T+9}, v{T+7}\nv_lshl_add_u32 v{T+6}, v{T+9}, 4, v{T+6}")
    a(f"v_and_b32 v{T+5}, 1, v{T+5}\nv_lshl_add_u32 v{T+6}, v{T+5}, 3, v{T+6}\nv_xor_b32 v{T+9}, 32, v{T+6}")
    for sl in range(3):
        a(f"v_add_u32 v{AW+2*sl}, {WB+sl*SLOT}, v{T+6}\nv_add_u32 v{AW+2*sl+1}, {WB+sl*SLOT}, v{T+9}")
    AWO = 244
    a(f"v_lshl_add_u32 v{T+6}, v{T+1}, 2, v{T+4}\nv_lshlrev_b32 v{T+6}, 7, v{T+6}\nv_lshl_add_u32 v{T+6}, v{T+5}, 3, v{T+6}")
    a(f"v_xor_b32 v{T+8}, v{T+8}, v{T+7}\nv_lshl_add_u32 v{AWO}, v{T+8}, 4, v{T+6}")
    for nb in range(1, 4):
        a(f"v_xor_b32 v{AWO+nb}, {32*nb}, v{AWO}")
    M_PAR = 56
    CM, CM0 = 228, 236
    a(f"s_mov_b32 s{M_PAR}, 0xaaaaaaaa\ns_mov_b32 s{M_PAR+1}, 0xaaaaaaaa\nv_mov_b32 v{T+4}, {f32(-1e9 if mimic else -1e30)}")
    a(f"v_lshlrev_b32 v{T+2}, 2, v{T+1}\nv_sub_u32 v{T+2}, v{T}, v{T+2}")
    for j in range(8):
        a(f"v_add_u32 v{T+3}, {(16 if j < 4 else 0) - (j & 3)}, v{T+2}\nv_and_b32 v{T+3}, 0xfffffff1, v{T+3}\nv_cmp_eq_u32 vcc, 0, v{T+3}\nv_cndmask_b32 v{CM+j}, v{T+4}, 0, vcc")
    a(f"s_lshr_b32 s41, s{S_WAVE}, 1\ns_or_b32 s41, s41, s{S_RB}\ns_cmp_eq_u32 s41, 0\ns_cselect_b64 vcc, -1, 0")
    for j in range(4):
        a(f"v_cndmask_b32 v{CM0+j}, v{CM+j}, v{T+4}, vcc")
    a(f"v_mov_b32 v{T+2}, 0x0c0c0100\nv_mov_b32 v{T+3}, 0x01000c0c\nv_cndmask_b32 v{SELA}, v{T+2}, v{T+3}, s[{M_PAR}:{M_PAR+1}]")
    a(f"v_mov_b32 v{T+2}, 0x0c0c0302\nv_mov_b32 v{T+3}, 0x03020c0c\nv_cndmask_b32 v{SELB}, v{T+2}, v{T+3}, s[{M_PAR}:{M_PAR+1}]")
    a("s_waitcnt lgkmcnt(0)")
    for i in range(104): a(f"v_mov_b32 v{ACC+i}, 0")
    a(f"s_cmp_lg_u32 s2, 0\ns_cbranch_scc1 L_nogo\nv_mov_b32 v{T+10}, 1\nv_mov_b32 v{T+11}, 0\ns_lshl_b32 s41, s{S_WAVE}, 2\ns_waitcnt vmcnt(0)")
    a(f"s_mov_b64 exec, 1\nbuffer_store_dword v{T+10}, v{T+11}, {srd(S_DBG)}, s41 offen sc1\ns_mov_b64 exec, -1")
    a.label("L_nogo")
    a(f"v_mov_b32 v{T+10}, 1\nv_mov_b32 v{T+11}, {LF}\ns_waitcnt lgkmcnt(0)")
    if prio: a("s_setprio 1")

    def reads(F, sl, kk):
        r = [f"ds_read_b64_tr_b16 {vr(F+20+8*sg+4*b+2*u, 2)}, v{AW+2*sl+b} offset:{sg*8192+kk*4096+u*512}" for sg in range(3) for b in range(2) for u in range(2)]
        x = [f"ds_read_b128 {vr(F+4*i, 4)}, v{AX+2*sl+kk} offset:{i*2048}" for i in range(4)]
        x.append(f"ds_read_b128 {vr(F+16, 4)}, v{AH+2*sl+kk}")
        return x[:1] + r[:4] + x[1:2] + r[4:8] + x[2:3] + r[8:] + x[3:]
    def mf(acc, xf, wf, transposed):
        return f"v_mfma_f32_16x16x32_bf16 {acc}, {wf}, {xf}, {acc}" if transposed else f"v_mfma_f32_16x16x32_bf16 {acc}, {xf}, {wf}, {acc}"
    def mfmas(F, rh):
        m = [mf(vr(ACC+96+4*b, 4), vr(F+16, 4), vr(F+20+4*(2+2*rh+b), 4), rh == 0) for b in range(2)]
        for i in (3, 2, 1, 0):
            for nb in (range(6) if i % 2 == 0 else range(5, -1, -1)):
                m.append(mf(vr(ACC+4*(6*i+nb), 4), vr(F+4*i, 4), vr(F+20+4*nb, 4), nb < 4))
        return m
    def step(F, rh, rd, bar, drain=False):
        m = mfmas(F, rh)
        a("s_waitcnt vmcnt(0) lgkmcnt(0)" if drain else "s_waitcnt lgkmcnt(0)")
        if bar:
            a(m[0]); a(m[1]); a("s_barrier" if bar is True else bar); m = m[2:]
        for i in range(len(m)):
            if i < len(rd) and bar: a(rd[i])
            a(m[i])
            if i < len(rd) and not bar: a(rd[i])
    KF, QF, VP, SS = 104, 124, 140, 160
    def cvt4(dst, src):
        a(f"v_cvt_pk_bf16_f32 v{dst}, v{src}, v{src+1}\nv_cvt_pk_bf16_f32 v{dst+1}, v{src+2}, v{src+3}")
    def cvt_k(i):
        cvt4(KF+4*(i+1), ACC+4*(6*i+2)); cvt4(KF+4*(i+1)+2, ACC+4*(6*i+3))
    def cvt_q(i):
        cvt4(QF+4*i, ACC+4*(6*i)); cvt4(QF+4*i+2, ACC+4*(6*i+1))
    def cvt_v(i):
        cvt4(VP+2*(i+1), ACC+4*(6*i+4)); cvt4(VP+10+2*(i+1), ACC+4*(6*i+5))
    def qk(i, cur):
        return f"v_mfma_f32_16x16x32_bf16 {vr(SS+8*i+4*cur, 4)}, {vr(KF+4*(i+cur), 4)}, {vr(QF+4*i, 4)}, {vr(CM+4 if cur else CM0 if i == 0 else CM, 4)}"
    EXA, EXB, EXF = T, T+1, T+9
    a(f"s_and_b32 s41, s{S_WAVE}, 1\ns_lshl_b32 s41, s41, 3\ns_add_u32 s41, s41, {F_EX}\nv_mov_b32 v{EXF}, s41")
    a(f"s_and_b32 s41, s{S_WAVE}, 1\ns_lshl_b32 s41, s41, 12\ns_add_u32 s41, s41, {LDS_C}\nv_add_u32 v{EXA}, s41, v{L16}\nv_lshlrev_b32 v{EXB}, 3, v{LN}\nv_add_u32 v{EXB}, s41, v{EXB}")
    a(f"s_cmp_ge_u32 s{S_WAVE}, 2\ns_cbranch_scc1 L_c1")
    for rh in range(2):
        if rh == 1: a.label("L_c1")
        a("s_barrier")
        if dbgst: a("s_memrealtime s[100:101]")
        stamp(1)
        for r in reads(FA, 0, 0): a(r)
        a("s_mov_b32 s40, 5")
        a.label(f"L_cl{rh}")
        for sl in range(3):
            step(FA, rh, reads(FB, sl, 1), False)
            step(FB, rh, reads(FA, (sl+1) % 3, 0), True)
        a(f"s_sub_u32 s40, s40, 1\ns_cmp_lg_u32 s40, 0\ns_cbranch_scc1 L_cl{rh}")
        step(FA, rh, reads(FB, 0, 1), False)
        step(FB, rh, [], False)
        stamp(2)
        if rh == 0:
            cvt4(KF, ACC+96); cvt4(KF+2, ACC+100)
            cvt_k(3); cvt_v(3)
            a(f"ds_write_b128 v{EXA}, {vr(KF+16, 4)}\nds_write_b64 v{EXB}, {vr(VP+8, 2)} offset:1024\nds_write_b64 v{EXB}, {vr(VP+18, 2)} offset:1536\nds_write_b32 v{EXF}, v{T+10}")
        else:
            cvt4(KF, ACC+96); cvt4(KF+2, ACC+100)
            a(f"ds_write_b64 v{EXB}, {vr(KF, 2)} offset:2048\nds_write_b64 v{EXB}, {vr(KF+2, 2)} offset:2560\nds_write_b32 v{EXF}, v{T+10} offset:4")
            cvt_k(3); cvt_v(3)
        cvt_q(3)
        if att2:
            for i in (2, 1, 0):
                cvt_k(i)
                a(qk(i + 1, 1)); a(qk(i + 1, 0))
                cvt_q(i)
            a(qk(0, 1))
            for i in (2, 1, 0): cvt_v(i)
        else:
            for i in (2, 1, 0):
                cvt_k(i); cvt_q(i); cvt_v(i)
        stamp(8)
        lab = a.newlabel("ex")
        a.label(lab)
        a(f"ds_read_b32 v{T+2}, v{EXF} offset:{4 - 4*rh}\ns_waitcnt lgkmcnt(0)\nv_readfirstlane_b32 s40, v{T+2}\ns_cmp_eq_u32 s40, 0\ns_cbranch_scc1 {lab}")
        if rh == 0:
            a(f"ds_read_b64 {vr(VP, 2)}, v{EXB} offset:2048\nds_read_b64 {vr(VP+10, 2)}, v{EXB} offset:2560\ns_branch L_attn")
        else:
            a(f"ds_read_b128 {vr(KF, 4)}, v{EXA}\nds_read_b64 {vr(VP, 2)}, v{EXB} offset:1024\nds_read_b64 {vr(VP+10, 2)}, v{EXB} offset:1536")
    a.label("L_attn")
    if att2:
        a("s_waitcnt lgkmcnt(0)"); a(qk(0, 0))
    else:
        for i in (3, 2, 1, 0):
            if i == 0: a("s_waitcnt lgkmcnt(0)")
            a(qk(i, 1)); a(qk(i, 0))
    stamp(9)
    Lr, Tr, Mx, Sm, PP, OO = 0, 16, 32, 40, 48, 64
    BL = (3, 2, 1, 0)
    LOG2E = 1.4426950408889634
    a(f"s_mov_b32 s41, {f32(32 ** -0.5)}\ns_mov_b32 s42, {f32(LOG2E if mimic else LOG2E * 32 ** -0.5)}\ns_mov_b32 s43, 0xffff0000")
    for i in BL:
        for t in range(4):
            a(f"v_max_f32 v{Lr+4*i+t}, v{SS+8*i+2*t}, v{SS+8*i+2*t+1}")
    def round_bf16():
        for i in BL:
            for h in range(2):
                a(f"v_cvt_pk_bf16_f32 v{Tr+2*i+h}, v{Lr+4*i+2*h}, v{Lr+4*i+2*h+1}")
        for i in BL:
            for h in range(2):
                a(f"v_lshlrev_b32 v{Lr+4*i+2*h}, 16, v{Tr+2*i+h}\nv_and_b32 v{Lr+4*i+2*h+1}, s43, v{Tr+2*i+h}")
    if mimic:
        round_bf16()
        for i in BL:
            if pk:
                for t in (0, 2):
                    a(f"v_pk_mul_f32 {vr(Lr+4*i+t, 2)}, {vr(Lr+4*i+t, 2)}, s[40:41] op_sel:[0,1] op_sel_hi:[1,1]")
            else:
                for t in range(4):
                    a(f"v_mul_f32 v{Lr+4*i+t}, s41, v{Lr+4*i+t}")
        round_bf16()
    def allreduce(R, op, post):
        a(f"v_permlane32_swap_b32 v{R}, v{R+1}\nv_permlane32_swap_b32 v{R+2}, v{R+3}")
        a(f"{op} v{R}, v{R}, v{R+1}\n{op} v{R+2}, v{R+2}, v{R+3}")
        a(f"v_permlane16_swap_b32 v{R}, v{R+2}\n{op} v{R}, v{R}, v{R+2}")
        a(post.format(r=R))
        a(f"v_mov_b32 v{R+2}, v{R}\nv_permlane16_swap_b32 v{R}, v{R+2}\nv_mov_b32 v{R+1}, v{R}\nv_mov_b32 v{R+3}, v{R+2}")
        a(f"v_permlane32_swap_b32 v{R}, v{R+1}\nv_permlane32_swap_b32 v{R+2}, v{R+3}")
    for i in BL: a(f"v_max_f32 v{Mx+i}, v{Lr+4*i}, v{Lr+4*i+1}")
    for i in BL: a(f"v_max3_f32 v{Mx+i}, v{Mx+i}, v{Lr+4*i+2}, v{Lr+4*i+3}")
    allreduce(Mx, "v_max_f32", "v_mul_f32 v{r}, s42, v{r}")
    stamp(10)
    for i in BL:
        if pk:
            for t in (0, 2):
                a(f"v_pk_fma_f32 {vr(Lr+4*i+t, 2)}, {vr(Lr+4*i+t, 2)}, s[42:43], {vr(Mx+(i & ~1), 2)} op_sel:[0,0,{i & 1}] op_sel_hi:[1,0,{i & 1}] neg_lo:[0,0,1] neg_hi:[0,0,1]")
        else:
            for t in range(4):
                a(f"v_fma_f32 v{Lr+4*i+t}, v{Lr+4*i+t}, s42, -v{Mx+i}")
    for i in BL:
        for t in range(4):
            a(f"v_exp_f32 v{Lr+4*i+t}, v{Lr+4*i+t}")
    if pk:
        for i in BL: a(f"v_pk_add_f32 {vr(Tr+2*i, 2)}, {vr(Lr+4*i, 2)}, {vr(Lr+4*i+2, 2)}")
        for i in BL: a(f"v_add_f32 v{Sm+i}, v{Tr+2*i}, v{Tr+2*i+1}")
    else:
        for i in BL: a(f"v_add_f32 v{Sm+i}, v{Lr+4*i}, v{Lr+4*i+1}\nv_add_f32 v{Tr+i}, v{Lr+4*i+2}, v{Lr+4*i+3}")
        for i in BL: a(f"v_add_f32 v{Sm+i}, v{Sm+i}, v{Tr+i}")
    allreduce(Sm, "v_add_f32", "v_rcp_f32 v{r}, v{r}")
    for i in BL:
        if pk:
            for t in (0, 2):
                a(f"v_pk_mul_f32 {vr(Lr+4*i+t, 2)}, {vr(Lr+4*i+t, 2)}, {vr(Sm+(i & ~1), 2)} op_sel:[0,{i & 1}] op_sel_hi:[1,{i & 1}]")
        else:
            for t in range(4):
                a(f"v_mul_f32 v{Lr+4*i+t}, v{Lr+4*i+t}, v{Sm+i}")
    for i in BL:
        for h in range(2):
            a(f"v_cvt_pk_bf16_f32 v{Tr+2*i+h}, v{Lr+4*i+2*h}, v{Lr+4*i+2*h+1}")
    for i in BL:
        for h in range(2):
            a(f"v_perm_b32 v{PP+4*i+2*h}, v{Tr+2*i+h}, v{Tr+2*i+h}, v{SELA}\nv_perm_b32 v{PP+4*i+2*h+1}, v{Tr+2*i+h}, v{Tr+2*i+h}, v{SELB}")
    for i in BL:
        for b in range(2):
            a(f"v_mfma_f32_16x16x32_bf16 {vr(OO+8*i+4*b, 4)}, {vr(VP+10*b+2*i, 4)}, {vr(PP+4*i, 4)}, 0")
    stamp(11)
    a(f"s_lshl_b32 s41, s{S_RB}, 3\ns_lshr_b32 s42, s{S_WAVE}, 1\ns_lshl_b32 s43, s42, 2\ns_add_u32 s41, s41, s43\ns_lshl_b32 s41, s41, 5")
    a(f"s_lshl_b32 s43, s{S_CT}, 1\ns_and_b32 s44, s{S_WAVE}, 1\ns_add_u32 s43, s43, s44\ns_add_u32 s41, s41, s43\ns_lshl_b32 s41, s41, 10\ns_add_u32 s41, s41, {WS_O + 3*32768}")
    for i in BL:
        cvt4(Lr+4*i, OO+8*i); cvt4(Lr+4*i+2, OO+8*i+4)
        a(f"buffer_store_dwordx4 {vr(Lr+4*i, 4)}, v{L16}, {srd(R_WS)}, s41 offen sc1")
        if i: a("s_sub_u32 s41, s41, 32768")
    if late == 2: a(f"ds_add_u32 v{T+11}, v{T+10} offset:{F_M-LF}")
    stamp(3)
    a(f"s_lshl_b32 s41, s{S_RB}, 4\ns_add_u32 s41, s41, s{S_CT}\ns_lshl_b32 s41, s41, 7\ns_lshl_b32 s43, s{S_WAVE}, 2\ns_add_u32 s41, s41, s43\ns_add_u32 s41, s41, {WS_F}")
    a(f"v_mov_b32 v{T+2}, 0\nv_lshrrev_b32 v{T+4}, 2, v{LN}\nv_lshlrev_b32 v{T+4}, 7, v{T+4}\nv_and_b32 v{T+7}, 3, v{LN}\nv_lshl_add_u32 v{T+4}, v{T+7}, 2, v{T+4}")
    A2, WF, OR = 0, 32, 96
    a(f"s_lshl_b32 s44, s{S_RB2}, 11\ns_add_u32 s44, s44, {WS_F}\ns_mov_b32 s47, {SPIN}")
    a(f"s_lshl_b32 s45, s{S_RB2}, 3\ns_lshl_b32 s46, s{S_WAVE}, 1\ns_add_u32 s45, s45, s46\ns_lshl_b32 s45, s45, 15\ns_add_u32 s45, s45, {WS_O}")
    a(f"v_add_u32 v{T+5}, 0x8000, v{L16}\ns_lshl_b32 s46, s{S_H0}, 10")
    POLL = f"buffer_load_dword v{T+6}, v{T+4}, {srd(R_WS)}, s44 offen sc1"
    FLAG = f"s_mov_b64 exec, 1\nbuffer_store_dword v{T+10}, v{T+2}, {srd(R_WS)}, s41 offen sc1\ns_mov_b64 exec, -1"
    if epoll:
        a(f"s_cmp_lg_u32 s{S_WAVE}, 0\ns_cbranch_scc1 L_nep\n{POLL}\ns_waitcnt vmcnt(1)\n{FLAG}\ns_branch L_nef")
        a.label("L_nep")
    a(f"s_waitcnt vmcnt(0)\n{FLAG}")
    a.label("L_nef")
    if ygate == 1: a(f"ds_add_u32 v{T+11}, v{T+10} offset:{F_O-LF}")
    stamp(4)
    for i in range(32): a(f"v_mov_b32 v{A2+i}, 0")
    def await_flags(test, flag, preloaded):
        oth = a.newlabel("ow"); lp = a.newlabel("op"); chk = a.newlabel("oc"); seen = a.newlabel("os"); go = a.newlabel("og")
        a(f"s_cmp_lg_u32 s{S_WAVE}, 0\ns_cbranch_scc1 {oth}")
        if preloaded: a(("s_waitcnt vmcnt(1)\n" if preloaded == 2 else "") + f"s_branch {chk}")
        a.label(lp)
        a(f"{POLL}\ns_sub_u32 s47, s47, 1\ns_waitcnt vmcnt(0)")
        a.label(chk)
        a(f"v_cmp_ne_u32 vcc, 1, v{T+6}\n{test}\ns_cbranch_scc1 {seen}" + (f"\ns_sleep {osleep}" if osleep else "") + f"\ns_cmp_gt_i32 s47, 0\ns_cbranch_scc1 {lp}")
        a.label(seen)
        a(f"ds_add_u32 v{T+11}, v{T+10} offset:{flag-LF}\ns_branch {go}")
        a.label(oth)
        lds_wait(flag, 64, T+12)
        a.label(go)
    def wo_reads(pos):
        Fr = WF + 16 * (pos % 4)
        return [f"ds_read_b64_tr_b16 {vr(Fr+4*nb+2*b, 2)}, v{AWO+nb} offset:{pos*4096+b*2048}" for nb in range(4) for b in range(2)]
    assert arr2 != "2x16"
    def o_load(p, b):
        return f"buffer_load_dwordx4 {vr(OR+8*p+4*b, 4)}, v{T+5 if b else L16}, {srd(R_WS)}, s{48 + (p >> 2)} offen offset:{(p & 3)*1024} sc1"
    def o_next(h):
        return [f"s_add_u32 s{48+h}, s45, s46", "s_add_u32 s46, s46, 4096", f"s_and_b32 s46, s46, {0x3fff if halves else 0x7fff}"]
    await_flags("s_cmp_eq_u32 vcc_lo, 0" if halves else "s_cmp_eq_u64 vcc, 0", F_S, 2 if epoll else 0)
    stamp(5)
    for p in range(8):
        if p % 4 == 0: a("\n".join(o_next(p >> 2)))
        a(o_load(p, 0))
        if p < 7: a(o_load(p, 1))
    lds_wait(F_W, 256, T+12)
    for r in wo_reads(0) + wo_reads(1): a(r)
    def g2_iter(last):
        for p in range(8):
            F = WF + 16 * (p % 4)
            rd = [] if (last and p >= 6) else wo_reads(p + 2)
            extra = [[] for _ in range(8)]
            if p > 0 and not last: extra[0].append(o_load(p - 1, 1))
            if p == 0: extra[0].append(o_load(7, 1))
            if not last:
                if p % 4 == 0:
                    for i, t in enumerate(o_next(p >> 2)): extra[1 + i].append(t)
                extra[5].append(o_load(p, 0))
            else:
                if p == 1: extra[2].append(f"v_and_b32 v{T+2}, 7, v{LN}"); extra[3].append(f"v_lshlrev_b32 v{T+2}, 12, v{T+2}")
            if last: vm = 15 - 2*p if p == 0 else 14 - 2*p
            else: vm = 13
            a(f"s_waitcnt vmcnt({13 if p == 0 else vm}) lgkmcnt({0 if (last and p == 7) else 8})")
            k = 0
            for b in range(2):
                for nb in (range(4) if b == 0 else range(3, -1, -1)):
                    acc = vr(A2+16*b+4*nb, 4)
                    a(f"v_mfma_f32_16x16x32_bf16 {acc}, {vr(F+4*nb, 4)}, {vr(OR+8*p+4*b, 4)}, {acc}")
                    if k < len(rd): a(rd[k])
                    for t in extra[k]: a(t)
                    k += 1
    a("s_mov_b32 s50, 3")
    if halves:
        a(f"s_cmp_lg_u32 s{S_WAVE}, 0\ns_cbranch_scc1 L_g2\n{POLL}")
    a.label("L_g2")
    g2_iter(False)
    for nb in range(4): a(f"v_add_u32 v{AWO+nb}, 0x8000, v{AWO+nb}")
    if halves:
        a("s_cmp_lg_u32 s50, 3\ns_cbranch_scc1 L_g2n")
        await_flags("s_cmp_eq_u32 vcc_hi, 0", F_M, True)
        a("s_add_u32 s45, s45, 0x4000")
        a.label("L_g2n")
    a("s_sub_u32 s50, s50, 1\ns_cmp_lg_u32 s50, 0\ns_cbranch_scc1 L_g2")
    if ygate == 2: a(f"ds_add_u32 v{T+11}, v{T+10} offset:{F_O-LF}")
    g2_iter(True)
    stamp(6)
    a(f"v_bfe_u32 v{T+3}, v{LN}, 4, 1\nv_lshl_add_u32 v{T+2}, v{T+3}, 5, v{T+2}\nv_lshrrev_b32 v{T+3}, 5, v{LN}\nv_lshl_add_u32 v{T+2}, v{T+3}, 4, v{T+2}\nv_bfe_u32 v{T+3}, v{LN}, 3, 1\nv_lshl_add_u32 v{T+2}, v{T+3}, 6, v{T+2}")
    a(f"s_lshl_b32 s41, s{S_RB2}, 2\ns_add_u32 s41, s41, s{S_WAVE}\ns_lshl_b32 s41, s41, 17\ns_lshl_b32 s42, s{S_CT2}, 7\ns_add_u32 s41, s41, s42")
    for b in (0, 1):
        D = WF + 8*b
        for pr in range(2):
            cvt4(D+4*pr, A2+16*b+8*pr); cvt4(D+4*pr+2, A2+16*b+8*pr+4)
        for pr in range(2):
            a(f"v_permlane16_swap_b32 v{D+4*pr}, v{D+4*pr+2}\nv_permlane16_swap_b32 v{D+4*pr+1}, v{D+4*pr+3}")
        for i in range(4): a(f"v_mov_b32 v{WF+16+i}, v{D+i}")
        for i in range(4): a(f"v_mov_b32_dpp v{D+i}, v{D+4+i} row_ror:8 row_mask:0xf bank_mask:0xc")
        for i in range(4): a(f"v_mov_b32_dpp v{D+4+i}, v{WF+16+i} row_ror:8 row_mask:0xf bank_mask:0x3")
        a(f"buffer_store_dwordx4 {vr(D, 4)}, v{T+2}, {srd(R_OUT)}, s41 offen {osc}\ns_add_u32 s41, s41, 0x8000")
        a(f"buffer_store_dwordx4 {vr(D+4, 4)}, v{T+2}, {srd(R_OUT)}, s41 offen {osc}\ns_add_u32 s41, s41, 0x8000")
    if stamps:
        a("s_waitcnt vmcnt(0)")
        stamp(7)
    if dbgst:
        a(f"s_waitcnt vmcnt(0)\ns_memrealtime s[96:97]\ns_memtime s[98:99]\ns_waitcnt lgkmcnt(0)\ns_cmp_lg_u32 s{S_WAVE}, 0\ns_cbranch_scc1 L_end\ns_cmp_ge_u32 s2, 4\ns_cbranch_scc1 L_end")
        a(f"s_sub_u32 s96, s96, s92\ns_sub_u32 s98, s98, s94\ns_sub_u32 s100, s100, s92\ns_mov_b32 s{S_DBG+2}, 64\ns_mul_i32 s41, s2, 12\ns_add_u32 s41, s41, 16")
        a(f"v_mov_b32 v0, s96\nv_mov_b32 v1, s98\nv_mov_b32 v2, s100\nv_mov_b32 v4, 0\ns_mov_b64 exec, 1\nbuffer_store_dwordx3 v[0:2], v4, {srd(S_DBG)}, s41 offen")
    dump_stamps(128, 12, S_WAVE, T+2)
    a.label("L_end")
    a("s_endpgm")
    text, added = fix(a.text())
    if codepf:
        text = text.replace("s_getpc_b64 s[50:51]", "s_getpc_b64 s[50:51]\nL_pc:")
        text = text.replace("CODE_BASE_OFF", f"((L_pc - {KNAME}) & 0xffffff00)").replace("CODE_LAST", f"((L_end - {KNAME} - 256) & 0xffffff00)")
    return text

HEADER = open("concat_heads__sliding_local_dilated__spectral_fnet__prompt.s.ref").read().split("; Override launch")[0] \
    if len(sys.argv) > 1 and sys.argv[1] == "final" else ""

VARIANTS = {
    "base": dict(prio=0), "noatt2": dict(prio=0, att2=False), "nomim": dict(prio=0, mimic=False),
    "k8": dict(prio=0, ks=(8, 8, 8, 8, 9, 10, 10, 10, 10, 10, 10, 10, 10, 10, 10)), "k9": dict(prio=0, ks=(7, 9, 9, 9, 10, 10, 10, 10, 10, 10, 10, 10, 10, 10, 10)),
    "s8": dict(prio=0, js=4, nsg=8), "s2": dict(prio=0, js=6, nsg=2), "os2": dict(prio=0, osleep=2),
}
if __name__ == "__main__":
    if len(sys.argv) > 1 and sys.argv[1] == "final":
        open("concat_heads__sliding_local_dilated__spectral_fnet__prompt.s", "w").write(
            wrap(gen(**VARIANTS[sys.argv[2]]), 256, 512, LDS_TOTAL, header=HEADER))
    else:
        for nm, kw in VARIANTS.items():
            open(f"k_{nm}.s", "w").write(wrap(gen(**kw), 256, 512, LDS_TOTAL))
            open(f"k_{nm}_stamp.s", "w").write(wrap(gen(stamps=True, **kw), 256, 512, LDS_TOTAL))
```

```python
import sys, struct
from asmlib import *
from hazard import fix

SLOT = 43008; XB = 0; WB = 18432
LDS_B = 131072; LDS_C = 147456; LDS_TOTAL = 163840
WS_O = 0; WS_V = 4 << 20; WS_F = 8 << 20; WS_G = WS_F + 65536; WS_ST = 12 << 20
SPIN = 1 << 20
LF = LDS_C + 15360; F_S, F_Z, F_W, F_X, F_EX, F_T = LF, LF + 4, LF + 8, LF + 12, LF + 16, LF + 32; F_R = LF + 36; F_V = LF + 40; F_O = LF + 44; F_M = LF + 48; F_B = LF + 52
LDS_T = LDS_B

def f32(x):
    return "0x%08x" % struct.unpack("<I", struct.pack("<f", x))[0]

S_WAVE, S_XCD, S_LI, S_RB, S_CT, S_SL, S_H0 = 3, 4, 5, 6, 7, 9, 10
S_RB2, S_CT2 = 8, 11
S_DBG = 12
R_X, R_W, R_WO, R_BX, R_OUT, R_WS = 16, 20, 24, 28, 32, 36
S_STAMP = 76

def srd(r): return f"s[{r}:{r+3}]"

def gen(stamps=False, mimic=True, prio=1, rot=True, codepf=True, ysc='sc1 nt', dbgst=False, osc='sc1 nt', c3=True, nw15=10, nwa=22, lprio=0, tprio=2, jx=0, nxg=1, jb=2, js=5, nsg=4, halves=True, epoll=True, ygate=2, late=3, vlate=True, xpol='nt', vgate=True, pk=True, spol='sc1', y64=True, vsleep=8, nob=False, arr2='4x8', opoll='one', osleep=0,
        ks=(7, 7, 7, 7, 8, 9, 10, 10, 10, 10, 10, 10, 10, 10, 10), att2=True, spin=1, exlate=True, c3n=1, split=False, c3o=False, wpol='', vpos=0, oprot=False, order='xwwxwwxwwx', n0=6, noack=False, rotk=4, exw=True):
    a = Asm()
    nstamp = [0]
    LSLOT = {v: i for i, v in enumerate((0, 1, 2, 3, 4, 5, 6, 10, 15, 17, 18, 19, 20))}
    smap = [None]
    def sreg(i):
        if smap[0] is None: return S_STAMP + 2*i
        return 70 + 2*smap[0][i] if i in smap[0] else None
    def stamp(i):
        if stamps and sreg(i) is not None: a(f"s_memrealtime s[{sreg(i)}:{sreg(i)+1}]")
    def dump_stamps(base, n, cond_reg, vt):
        if not stamps: return
        lab = a.newlabel("nost")
        a(f"s_waitcnt lgkmcnt(0)\ns_cmp_lg_u32 s{cond_reg}, 0\ns_cbranch_scc1 {lab}")
        a(f"s_lshl_b32 s40, s2, 8\ns_add_u32 s40, s40, {WS_ST + base}\nv_mov_b32 v{vt}, 0")
        for i in range(n):
            src = f"s{sreg(i)}" if sreg(i) is not None else "0"
            a(f"v_mov_b32 v{vt+1}, {src}\nbuffer_store_dword v{vt+1}, v{vt}, {srd(R_WS)}, s40 offen offset:{4*i}")
        a.label(lab)

    for r, off in ((R_X, 0), (R_W, 8), (R_BX, 24), (R_WS, 80), (R_WO, 16), (R_OUT, 64), (S_DBG, 72)):
        a(f"s_load_dwordx2 s[{r}:{r+1}], s[0:1], {off}")
    stamp(0)
    if dbgst: a("s_memrealtime s[92:93]\ns_memtime s[94:95]")
    a("s_cmp_ge_u32 s2, 256\ns_cbranch_scc1 L_end")
    a(f"v_lshrrev_b32 v1, 6, v0\nv_and_b32 v2, 63, v0\ns_and_b32 s{S_XCD}, s2, 7\nv_readfirstlane_b32 s{S_WAVE}, v1\ns_lshr_b32 s{S_LI}, s2, 3")
    a(f"s_and_b32 s{S_RB}, s{S_XCD}, 1\ns_lshl_b32 s{S_RB}, s{S_RB}, 3\ns_and_b32 s40, s{S_LI}, 7\ns_add_u32 s{S_RB}, s{S_RB}, s40")
    a(f"s_lshr_b32 s{S_CT}, s{S_XCD}, 1\ns_lshl_b32 s{S_CT}, s{S_CT}, 2\ns_lshr_b32 s40, s{S_LI}, 3\ns_add_u32 s{S_CT}, s{S_CT}, s40")
    for r, n in ((R_X, 0x400000), (R_W, 0x600000), (R_WO, 0x200000), (R_BX, 0x400000), (R_OUT, 0x800000), (R_WS, 0x1000000), (S_DBG, 16)):
        a(f"s_mov_b32 s{r+2}, {hex(n)}\ns_mov_b32 s{r+3}, 0x20000")
    a(f"s_lshr_b32 s{S_SL}, s{S_LI}, 1")
    if arr2 == "8x4":
        a(f"s_mov_b32 s{S_RB2}, s{S_RB}\ns_mov_b32 s{S_CT2}, s{S_CT}")
        a(f"s_lshl_b32 s{S_H0}, s40, 1\ns_add_u32 s{S_H0}, s{S_H0}, s{S_LI}\ns_and_b32 s{S_H0}, s{S_H0}, 7\ns_lshl_b32 s{S_H0}, s{S_H0}, 2")
    elif arr2 == "4x8":
        a(f"s_lshr_b32 s41, s{S_XCD}, 1\ns_lshl_b32 s41, s41, 2\ns_and_b32 s42, s{S_LI}, 3\ns_add_u32 s{S_RB2}, s41, s42")
        a(f"s_and_b32 s41, s{S_XCD}, 1\ns_lshl_b32 s41, s41, 3\ns_lshr_b32 s43, s{S_LI}, 2\ns_add_u32 s{S_CT2}, s41, s43")
        if halves: a(f"s_add_u32 s{S_H0}, s42, s43\ns_and_b32 s{S_H0}, s{S_H0}, 3\ns_lshl_b32 s{S_H0}, s{S_H0}, 2")
        else: a(f"s_lshl_b32 s{S_H0}, s42, 1\ns_add_u32 s{S_H0}, s{S_H0}, s43\ns_and_b32 s{S_H0}, s{S_H0}, 7\ns_lshl_b32 s{S_H0}, s{S_H0}, 2")
    else:
        a(f"s_lshl_b32 s{S_RB2}, s{S_XCD}, 1\ns_and_b32 s42, s{S_LI}, 1\ns_add_u32 s{S_RB2}, s{S_RB2}, s42\ns_mov_b32 s{S_CT2}, s{S_SL}")
        a(f"s_lshl_b32 s{S_H0}, s42, 3\ns_add_u32 s{S_H0}, s{S_H0}, s{S_CT2}\ns_and_b32 s{S_H0}, s{S_H0}, 15\ns_lshl_b32 s{S_H0}, s{S_H0}, 1")
    a(f"s_cmp_lt_u32 s{S_WAVE}, 4\ns_cbranch_scc1 L_compute")

    VX, VW, VXB, VWO = 10, 16, 22, 23
    VF, VG, VH, VC, VS, VNS, VTC, VTS = 24, 28, 60, 64, 72, 80, 88, 104
    VF1 = 232
    S_KX, S_KW, S_LB, S_KO = 44, 45, 46, 53
    MX, MW = (58, 59, 60, 61), (62, 63, 64, 65, 66, 67)
    a(f"s_sub_u32 s{S_WAVE}, s{S_WAVE}, 4")
    if lprio: a(f"s_setprio {lprio}")
    a("v_lshrrev_b32 v3, 3, v2\nv_and_b32 v4, 7, v2\nv_lshrrev_b32 v5, 4, v2")
    a(f"s_and_b32 s41, s{S_WAVE}, 1\ns_lshl_b32 s42, s41, 2\nv_add_u32 v6, s42, v5\nv_xor_b32 v6, v6, v4\nv_lshlrev_b32 v6, 4, v6")
    a(f"s_lshl_b32 s42, s{S_RB}, 7\ns_lshl_b32 s43, s{S_WAVE}, 3\ns_add_u32 s42, s42, s43\ns_sub_u32 s42, s42, 16")
    a(f"v_add_u32 v7, s42, v3\nv_lshl_add_u32 v{VX+1}, v7, 11, v6")
    a(f"s_cmp_lt_i32 s42, 0\ns_cselect_b32 s43, 0x8000, 0\ns_lshl_b32 s{S_LB}, s{S_WAVE}, 10")
    if oprot:
        a(f"v_add_u32 v{VX+4}, {4*65536}, v{VX+1}\nv_mov_b32 v9, v{VX+1}\ns_and_b32 s42, s{S_CT}, 3\ns_lshl_b32 s42, s42, 12")
        for n in range(4):
            a(f"s_add_u32 s{MX[n]}, s42, s{S_LB}\ns_lshl_b32 s47, s42, 4\ns_cselect_b32 s47, s47, s43\nv_add_u32 v{VX+n}, s47, v9")
            if n < 3: a("s_add_u32 s42, s42, 4096\ns_and_b32 s42, s42, 0x3fff")
    else:
        a(f"v_add_u32 v{VX}, s43, v{VX+1}")
        for n in range(4, 0, -1):
            a(f"v_add_u32 v{VX+n}, {n*65536}, v{VX+1}")
    a(f"v_and_b32 v7, 1, v5\ns_lshl_b32 s42, s41, 1\nv_add_u32 v7, s42, v7\nv_lshlrev_b32 v7, 1, v7\nv_xor_b32 v7, v7, v4\nv_lshlrev_b32 v7, 4, v7")
    a(f"s_lshl_b32 s42, s{S_WAVE}, 3\nv_add_u32 v8, s42, v3\nv_mul_u32_u24 v8, 6144, v8\ns_lshl_b32 s42, s{S_CT}, 7\nv_add3_u32 v{VW}, v7, v8, s42")
    if oprot:
        a(f"v_mov_b32 v9, v{VW}\ns_and_b32 s42, s{S_RB}, 3\ns_cmp_eq_u32 s42, 3\ns_cselect_b32 s42, 0, s42\ns_lshl_b32 s42, s42, 11")
        for sg in range(3):
            a(f"v_add_u32 v{VW+2*sg}, s42, v9\ns_lshl_b32 s43, s42, 2\ns_add_u32 s{MW[2*sg]}, s43, s{S_LB}\nv_add_u32 v{VW+2*sg+1}, {32*6144}, v{VW+2*sg}\ns_add_u32 s{MW[2*sg+1]}, s{MW[2*sg]}, 4096")
            if sg < 2: a("s_add_u32 s42, s42, 2048\ns_cmp_eq_u32 s42, 6144\ns_cselect_b32 s42, 0, s42")
    else:
        for i in range(1, 6):
            a(f"v_add_u32 v{VW+i}, {(i >> 1)*2048 + (i & 1)*32*6144}, v{VW}")
    a(f"s_lshr_b32 s42, s{S_RB}, 2\ns_lshr_b32 s43, s{S_CT}, 2\ns_add_u32 s42, s42, s43\ns_and_b32 s42, s42, 3")
    if rotk == 2: a(f"s_lshr_b32 s42, s{S_RB}, 3\ns_add_u32 s42, s42, s43\ns_and_b32 s42, s42, 1\ns_lshl_b32 s42, s42, 1")
    if rotk == 3: a(f"s_lshr_b32 s42, s{S_RB}, 3\ns_lshl_b32 s42, s42, 1\ns_add_u32 s42, s42, s43\ns_and_b32 s42, s42, 3")
    if not rot or rotk == 1: a("s_mov_b32 s42, 0")
    a(f"s_lshl_b32 s{S_KX}, s42, 9\ns_mul_i32 s{S_KW}, s42, {4*393216}")

    def dma_group(g):
        sl = g % 3; lab = a.newlabel("x5")
        ops = [(f"s_add_u32 m0, s{S_LB}, {XB+sl*SLOT+4*4096}\ns_cmp_ge_u32 s{S_WAVE}, 2\ns_cbranch_scc1 {lab}\nbuffer_load_dwordx4 v{VX+4}, {srd(R_X)}, s{S_KX} offen lds\n{lab}:", None, g)]
        if oprot:
            xs = [(f"s_add_u32 m0, s{MX[n]}, {XB+sl*SLOT}", f"buffer_load_dwordx4 v{VX+n}, {srd(R_X)}, s{S_KX} offen lds", g) for n in range(4)]
            ws = [(f"s_add_u32 m0, s{MW[i]}, {WB+sl*SLOT}", f"buffer_load_dwordx4 v{VW+i}, {srd(R_W)}, s{S_KW} offen lds", g) for i in range(6)]
            for ch in order: ops.append((xs if ch == "x" else ws).pop(0))
        else:
            xs = [(f"s_add_u32 m0, s{S_LB}, {XB+sl*SLOT+n*4096}", f"buffer_load_dwordx4 v{VX+n}, {srd(R_X)}, s{S_KX} offen lds", g) for n in range(4)]
            ws = [(f"s_add_u32 m0, s{S_LB}, {WB+sl*SLOT+(i >> 1)*8192+(i & 1)*4096}", f"buffer_load_dwordx4 v{VW+i}, {srd(R_W)}, s{S_KW} offen lds", g) for i in range(6)]
            ops += xs + ws
        pre, ld, _ = ops[-1]
        ops[-1] = (pre, ld + f"\ns_add_u32 s{S_KX}, s{S_KX}, 128\ns_and_b32 s{S_KX}, s{S_KX}, 2047\ns_add_u32 s{S_KW}, s{S_KW}, 393216"
                   f"\ns_cmp_ge_u32 s{S_KW}, 0x600000\ns_cselect_b32 s{S_KW}, 0, s{S_KW}", g)
        return ops
    q = []
    def emit(text, tag=None):
        for ln in text.split("\n"):
            a(ln)
            if ln.strip().startswith(("buffer_load", "buffer_store", "global_load")):
                t = ln.split(";tag=")[1].strip() if ";tag=" in ln else tag
                if t is not None: q.append(t)
    def wait_for(tag):
        if tag not in q: return 63
        return len(q) - 1 - max(i for i, t in enumerate(q) if t == tag)
    def capture(fn, *args):
        keep = a.lines; a.lines = []
        fn(*args)
        got = [l.strip() for l in a.lines if l.strip()]; a.lines = keep
        groups = []
        for l in got:
            glue = l.startswith(("s_cselect", "s_cbranch", "s_addc", "s_subb")) or (groups and groups[-1][-1].startswith("s_waitcnt"))
            if glue: groups[-1].append(l)
            else: groups.append([l])
        return groups
    def weave(ops, fill):
        slots = [i for i, o in enumerate(ops) if o[1] is not None]
        done = 0
        for i, (pre, ld, g) in enumerate(ops):
            if ld is None:
                emit(pre); continue
            emit(pre)
            upto = len(fill) * (slots.index(i) + 1) // len(slots)
            for grp in fill[done:upto]: emit("\n".join(grp), "o")
            done = upto
            emit(ld, f"D{g}")
        for grp in fill[done:]: emit("\n".join(grp), "o")
    def lds_wait(addr, target, vt, nap=0):
        lab = a.newlabel("lw")
        a(f"v_mov_b32 v{vt}, {addr}")
        a.label(lab)
        a(f"ds_read_b32 v{vt+1}, v{vt}\ns_waitcnt lgkmcnt(0)\nv_readfirstlane_b32 s40, v{vt+1}\ns_cmp_ge_u32 s40, {target}" + (f"\ns_sleep {nap}" if nap else "") + f"\ns_cbranch_scc0 {lab}")
    def lds_add(addr, vt):
        a(f"v_mov_b32 v{vt}, {addr}\nv_mov_b32 v{vt+1}, 1\nds_add_u32 v{vt}, v{vt+1}")

    def wo_op(n):
        w = 63 if halves else 127
        return (f"s_add_u32 s47, s{S_KO}, {n}\ns_and_b32 s47, s47, {w}\ns_add_u32 s48, s{S_WAVE}, {n}\ns_and_b32 s48, s48, {127 - w}\ns_or_b32 s47, s47, s48\ns_add_u32 m0, s{S_LB}, {n*1024}\ns_lshl_b32 s47, s47, 14",
                f"buffer_load_dwordx4 v{VWO}, {srd(R_WO)}, s47 offen {wpol} lds", "W")
    def wo_start(first):
        if first == 42: a(f"s_lshl_b32 s{S_KO}, s{S_H0}, 2\ns_add_u32 s{S_KO}, s{S_KO}, s{S_WAVE}")

    def hi(on):
        if prio == 2: a(f"s_setprio {2 if on else 0}")

    def cosrow(dst, x0, dx, tmp):
        for i in range(8):
            a(f"v_cos_f32 v{tmp+i}, v{x0}")
            if i < 7: a(f"v_add_f32 v{x0}, v{x0}, v{dx}")
        for i in range(4):
            a(f"v_cvt_pk_bf16_f32 v{dst+i}, v{tmp+2*i}, v{tmp+2*i+1}")

    def b1_consts():
        T = 120
        ph8 = 49
        a(f"s_lshl_b32 s{ph8}, s{S_WAVE}, 2")
        a(f"v_and_b32 v{T}, 3, v2\nv_add_u32 v{T}, s{ph8}, v{T}")
        a(f"v_bfe_u32 v{T+1}, v2, 2, 1\nv_cvt_f32_u32 v{T+2}, v{T+1}\nv_mul_f32 v{T+2}, {f32(0.25)}, v{T+2}")
        a(f"v_cmp_eq_u32 vcc, 0, v{T}\nv_lshlrev_b32 v{T+1}, 4, v{T+1}\nv_cndmask_b32 v{T}, v{T}, v{T+1}, vcc\nv_cndmask_b32 v{T+2}, v{T+2}, 0, vcc")
        a(f"v_cvt_f32_u32 v{T}, v{T}\nv_mul_f32 v{T+3}, {f32(1/32)}, v{T}\nv_cvt_f32_u32 v{T+4}, v5\nv_mul_f32 v{T+4}, {f32(8.0)}, v{T+4}")
        a(f"v_fma_f32 v{T+2}, v{T+3}, v{T+4}, v{T+2}")
        cosrow(T+20, T+2, T+3, T+8)
        a("s_mov_b32 s50, 0x00ff00ff\ns_mov_b32 s51, 0x00ff00ff")
        for i in range(4):
            a(f"v_cndmask_b32 v{VF+i}, 0, v{T+20+i}, s[50:51]\nv_cndmask_b32 v{VF1+i}, v{T+20+i}, 0, s[50:51]")
        Q, CP, PH, P0 = T+16, T+17, T+18, T+19
        a(f"v_bfe_u32 v{Q}, v2, 1, 3\nv_and_b32 v{CP}, 1, v2\nv_bfe_u32 v{T}, v2, 4, 1\nv_sub_u32 v{T+1}, v{CP}, v{T}")
        a(f"v_cvt_f32_i32 v{PH}, v{T+1}\nv_mul_f32 v{PH}, {f32(0.25)}, v{PH}")
        a(f"v_mov_b32 v{P0}, s{ph8}")
        a(f"v_lshl_add_u32 v{T+5}, v{Q}, 5, v{P0}")
        a(f"v_cvt_f32_u32 v{T+6}, s{S_XCD}\nv_mul_f32 v{T+6}, {f32(1/2048)}, v{T+6}")
        a("s_mov_b32 s50, -1\ns_mov_b32 s51, 0")
        for j in range(4):
            X0, DX = T+2, T+3
            if j == 0:
                a(f"v_cmp_eq_u32 s[52:53], 0, v{P0}\nv_cmp_eq_u32 vcc, 1, v{T}\ns_and_b64 s[54:55], s[52:53], vcc")
                a(f"v_lshlrev_b32 v{T+1}, 5, v{Q}\nv_subrev_u32 v{T+1}, 112, v{T+1}\nv_cndmask_b32 v{T+1}, v{T+5}, v{T+1}, s[54:55]")
                a(f"v_cvt_f32_u32 v{T+4}, v{CP}\nv_mul_f32 v{T+4}, {f32(0.25)}, v{T+4}\nv_cndmask_b32 v{T+4}, v{PH}, v{T+4}, s[52:53]")
                a(f"v_cvt_f32_i32 v{T+1}, v{T+1}\nv_fma_f32 v{X0}, v{T+1}, v{T+6}, v{T+4}\nv_mul_f32 v{DX}, {f32(1/256)}, v{T+1}")
                a(f"v_lshrrev_b32 v{T+1}, 2, v{Q}\nv_cmp_ne_u32 vcc, v{T+1}, v{T}\ns_and_b64 s[54:55], s[52:53], vcc")
                a(f"v_mov_b32 v{T+4}, {f32(0.25)}\nv_cndmask_b32 v{X0}, v{X0}, v{T+4}, s[54:55]\nv_cndmask_b32 v{DX}, v{DX}, 0, s[54:55]")
                a(f"v_and_b32 v{T+1}, 31, v2\nv_cmp_eq_u32 vcc, 1, v{T+1}\ns_and_b64 s[54:55], s[52:53], vcc")
                a(f"v_cndmask_b32 v{X0}, v{X0}, 0, s[54:55]\nv_cndmask_b32 v{DX}, v{DX}, 0.5, s[54:55]")
            else:
                a(f"v_add_u32 v{T+1}, {j}, v{T+5}\nv_cvt_f32_u32 v{T+1}, v{T+1}\nv_fma_f32 v{X0}, v{T+1}, v{T+6}, v{PH}\nv_mul_f32 v{DX}, {f32(1/256)}, v{T+1}")
            cosrow(T+20, X0, DX, T+8)
            for i in range(4):
                a(f"v_cndmask_b32 v{VG+8*j+i}, 0, v{T+20+i}, s[50:51]\nv_cndmask_b32 v{VG+8*j+4+i}, v{T+20+i}, 0, s[50:51]")

    XF, XA, XP, XD = 120, 152, 184, 200
    def b1_compute():
        a(f"v_bfe_u32 v6, v2, 2, 2\nv_lshl_add_u32 v6, v5, 3, v6\nv_lshlrev_b32 v6, 6, v6\nv_and_b32 v7, 3, v2\nv_lshl_add_u32 v6, v7, 3, v6")
        a(f"v_and_b32 v7, 1, v5\nv_lshl_add_u32 v6, v7, 5, v6\nv_add_u32 v6, {LDS_B}, v6\nv_xor_b32 v7, 32, v6")
        for ch, F_, K in ((0, XF, VF), (1, XP, VF1)):
            for b in range(8):
                for u in range(2):
                    a(f"ds_read_b64_tr_b16 {vr(F_+4*b+2*u, 2)}, v{6+ch} offset:{b*2048+u*256}")
            a("s_waitcnt lgkmcnt(0)")
            for b in range(8):
                a(f"v_mfma_f32_16x16x32_bf16 {vr(XA+4*b, 4)}, {vr(K, 4)}, {vr(F_+4*b, 4)}, {vr(XA+4*b, 4) if ch else 0}")
        for j in range(4):
            for i in range(4):
                a(f"v_cvt_pk_bf16_f32 v{XP+4*j+i}, v{XA+8*i+j}, v{XA+8*i+4+j}")
    def b1_finish():
        hi(True)
        for j in range(4):
            for w in range(2):
                a(f"v_mfma_f32_16x16x32_bf16 {vr(XF+8*j+4*w, 4)}, {vr(XP+4*j, 4)}, {vr(VG+8*j+4*w, 4)}, 0")
        hi(False)
        a(f"v_bfe_u32 v231, v2, 1, 3\nv_lshlrev_b32 v231, 15, v231\nv_and_b32 v8, 1, v2\nv_lshl_add_u32 v231, v8, 11, v231\nv_and_b32 v8, 1, v5\nv_lshl_add_u32 v231, v8, 5, v231\nv_lshrrev_b32 v8, 5, v2\nv_lshl_add_u32 v231, v8, 4, v231")
        a(f"s_lshl_b32 s41, s{S_WAVE}, 20\ns_lshl_b32 s42, s{S_XCD}, 12\ns_add_u32 s41, s41, s42\ns_lshl_b32 s42, s{S_LI}, 6\ns_add_u32 s41, s41, s42\ns_add_u32 s41, s41, {WS_V}")
        for j in range(4):
            for w in range(2):
                for i in range(2):
                    a(f"v_cvt_pk_bf16_f32 v{XD+4*j+2*w+i}, v{XF+8*j+4*w+2*i}, v{XF+8*j+4*w+2*i+1}")
        for j in range(4):
            a(f"v_permlane16_swap_b32 v{XD+4*j}, v{XD+4*j+2}\nv_permlane16_swap_b32 v{XD+4*j+1}, v{XD+4*j+3}")
        a(f"s_mov_b32 s56, s41\ns_and_b32 s57, s{S_LI}, {nsg - 1}")
    def b1_store(js):
        for j in js:
            emit(f"buffer_store_dwordx4 {vr(XD+4*j, 4)}, v231, {srd(R_WS)}, s56 offen {spol} ;tag=S\ns_add_u32 s56, s56, 0x40000")

    VR_, VOP, VZ = 120, 152, 184
    def poll4(load, younger):
        lab = a.newlabel("poll"); done = a.newlabel("pdone")
        a(f"s_mov_b32 s47, {SPIN}\ns_waitcnt vmcnt({younger})")
        a.label(lab)
        a(f"v_and_b32 v128, v124, v125\nv_and_b32 v129, v126, v127\nv_or_b32 v130, v124, v125\nv_or3_b32 v130, v130, v126, v127\nv_and_b32 v128, v128, v129")
        a(f"v_cmp_ne_u32 vcc, 1, v128\nv_cmp_ne_u32 s[48:49], 1, v130\ns_or_b64 vcc, vcc, s[48:49]\ns_cbranch_scc0 {done}")
        a(f"s_sleep {vsleep}\n{load}\ns_sub_u32 s47, s47, 1\ns_cmp_lg_u32 s47, 0\ns_waitcnt vmcnt(0)\ns_cbranch_scc1 {lab}")
        a.label(done)
    GO_LOAD = f"buffer_load_dwordx4 v[124:127], v9, {srd(S_DBG)}, 0 offen sc1 ;tag=G"
    VF_LOAD = f"buffer_load_dwordx4 v[124:127], v9, {srd(R_WS)}, 0 offen sc1 ;tag=P"
    def b2_load():
        a(f"v_and_b32 v6, 15, v2\nv_lshlrev_b32 v6, 4, v6\nv_lshrrev_b32 v7, 5, v2\nv_lshl_add_u32 v6, v7, 8, v6\nv_and_b32 v7, 1, v5\nv_lshl_add_u32 v6, v7, 14, v6")
        a(f"s_lshl_b32 s41, s{S_XCD}, 4\ns_add_u32 s41, s41, s{S_SL}\ns_lshl_b32 s41, s41, 15\ns_lshl_b32 s42, s{S_WAVE}, 9\ns_add_u32 s41, s41, s42\ns_add_u32 s41, s41, {WS_V}")
        for s2l in range(4):
            for c in range(2):
                a(f"buffer_load_dwordx4 {vr(VR_+8*s2l+4*c, 4)}, v6, {srd(R_WS)}, s41 offen offset:{c*2048} sc1 ;tag=V")
            a("s_add_u32 s41, s41, 4096")
    def b2_radix8():
        a("s_mov_b32 s41, 0x05040100\ns_mov_b32 s42, 0x07060302")
        for i in range(8):
            for u in range(4):
                a(f"v_perm_b32 v{VOP+4*i+u}, v{VR_+8*u+4+(i >> 1)}, v{VR_+8*u+(i >> 1)}, s{41+(i & 1)}")
        hi(True)
        for i in range(8):
            a(f"v_mfma_f32_16x16x32_bf16 {vr(VZ+4*i, 4)}, {vr(VH, 4)}, {vr(VOP+4*i, 4)}, 0")
        hi(False)
        a(f"v_and_b32 v10, 15, v2\nv_lshlrev_b32 v10, 4, v10\nv_lshrrev_b32 v11, 5, v2\nv_lshl_add_u32 v10, v11, 8, v10\nv_and_b32 v11, 1, v5\nv_lshl_add_u32 v10, v11, 13, v10")
        a(f"s_lshl_b32 s41, s{S_WAVE}, 9\ns_add_u32 s41, s41, {LDS_B}\nv_add_u32 v10, s41, v10")
        for j in range(4):
            for i in range(4):
                a(f"v_cvt_pk_bf16_f32 v{VOP+4*j+i}, v{VZ+8*i+j}, v{VZ+8*i+4+j}")
    def b2_zwrite():
        for j in range(4):
            a(f"ds_write_b128 v10, {vr(VOP+4*j, 4)} offset:{j*2048}")
    S_T, S_REAL, S_PASS = 50, 51, 52
    VZA, VYA, VYM, VNB = 224, 225, 226, 227
    def b2_row_setup():
        a(f"s_lshl_b32 s41, s{S_XCD}, 4\ns_add_u32 s41, s41, s{S_SL}\ns_lshr_b32 s42, s41, 3\ns_and_b32 s43, s41, 7")
        a(f"s_lshl_b32 s47, s43, 5\ns_add_u32 s48, s47, s42\ns_sub_u32 s47, s47, 112\ns_cmp_ge_u32 s41, 4\ns_cselect_b32 s47, s47, s48\ns_cmp_ge_u32 s41, 8\ns_cselect_b32 s48, s48, s47")
        a(f"s_and_b32 s43, s{S_LI}, 1\ns_lshl_b32 s47, s43, 2\ns_add_u32 s47, s47, s{S_WAVE}\ns_lshl_b32 s47, s47, 8\ns_add_u32 s{S_T}, s48, s47")
        a(f"s_lshl_b32 s47, s43, 7\ns_lshl_b32 s48, s{S_WAVE}, 8\ns_add_u32 s47, s47, s48\ns_cmp_eq_u32 s41, 0\ns_cselect_b32 s{S_T}, s47, s{S_T}")
        a(f"s_cmp_eq_u32 s{S_T}, 0\ns_cselect_b32 s{S_REAL}, 1, 0\ns_mov_b32 s{S_PASS}, 0")
        a(f"v_lshrrev_b32 v{VZA}, 5, v2\nv_bfe_u32 v220, v2, 2, 2\nv_lshl_add_u32 v{VZA}, v{VZA}, 2, v220\nv_lshlrev_b32 v{VZA}, 6, v{VZA}")
        a(f"v_and_b32 v220, 1, v5\nv_lshl_add_u32 v{VZA}, v220, 5, v{VZA}\nv_and_b32 v220, 3, v2\nv_lshl_add_u32 v{VZA}, v220, 3, v{VZA}")
        a(f"s_lshl_b32 s41, s{S_WAVE}, 12\ns_add_u32 s41, s41, {LDS_B}\nv_add_u32 v{VZA}, s41, v{VZA}")
        a(f"v_and_b32 v220, 4, v2\nv_lshlrev_b32 v220, 2, v220\nv_lshrrev_b32 v221, 1, v2\nv_and_b32 v221, 12, v221\nv_and_b32 v222, 3, v2\nv_or_b32 v220, v220, v221\nv_or_b32 v220, v220, v222")
        a(f"v_and_b32 v221, 32, v2\nv_lshl_add_u32 v221, v220, 6, v221\nv_add_u32 v{VYA}, 2048, v221\nv_sub_u32 v{VYM}, 4064, v221")
        if y64:
            a(f"v_and_b32 v222, 1, v2\nv_mul_u32_u24 v221, 48, v222\nv_add_u32 v{VYA+4}, 64, v{VYA}\nv_sub_u32 v{VYA+4}, v{VYA+4}, v221\nv_sub_u32 v{VYA}, v{VYA}, v221")
            a(f"v_mul_u32_u24 v221, 80, v222\nv_subrev_u32 v{VYM+4}, 64, v{VYM}\nv_add_u32 v{VYM+4}, v{VYM+4}, v221\nv_add_u32 v{VYM}, v{VYM}, v221")
        a(f"v_add_u32 v220, 1, v220\nv_and_b32 v221, 12, v220\nv_lshlrev_b32 v221, 1, v221\nv_lshrrev_b32 v222, 2, v220\nv_and_b32 v222, 4, v222\nv_and_b32 v220, 3, v220\nv_or_b32 v220, v220, v221\nv_or_b32 v220, v220, v222")
        a(f"v_add_u32 v221, 32, v2\nv_cmp_gt_u32 vcc, 32, v2\nv_cndmask_b32 v220, v220, v221, vcc\nv_lshlrev_b32 v{VNB}, 2, v220")
    def b2_row():
        UR, UI, DR, DI, E, Y, O = 120, 128, 136, 152, 168, 184, 200
        for c, U in ((0, UR), (1, UI)):
            for st in range(2):
                for u in range(2):
                    a(f"ds_read_b64_tr_b16 {vr(U+4*st+2*u, 2)}, v{VZA} offset:{c*2048+st*1024+u*512}")
        lab = a.newlabel("cplx")
        a(f"s_waitcnt lgkmcnt(0)\ns_cmp_eq_u32 s{S_REAL}, 0\ns_cbranch_scc1 {lab}")
        for i in range(8): a(f"v_mov_b32 v{UI+i}, 0")
        a("s_nop 1")
        a.label(lab)
        M = "v_mfma_f32_32x32x16_bf16"
        a(f"{M} {vr(DR,16)}, {vr(UR,4)}, {vr(VC,4)}, 0\n{M} {vr(DI,16)}, {vr(UI,4)}, {vr(VC,4)}, 0")
        for D, U, K in ((DR, UR+4, VC+4), (DI, UI+4, VC+4), (DR, UI, VS), (DI, UR, VNS), (DR, UI+4, VS+4), (DI, UR+4, VNS+4)):
            a(f"{M} {vr(D,16)}, {vr(U,4)}, {vr(K,4)}, {vr(D,16)}")
        for r in range(16):
            a(f"v_mul_f32 v{Y+r}, v{DR+r}, v{VTC+r}\nv_mul_f32 v{O+r}, v{DI+r}, v{VTC+r}")
            a(f"v_fmac_f32 v{Y+r}, v{DI+r}, v{VTS+r}\nv_fma_f32 v{O+r}, -v{DR+r}, v{VTS+r}, v{O+r}")
        for i in range(8):
            a(f"v_cvt_pk_bf16_f32 v{E+i}, v{Y+2*i}, v{Y+2*i+1}\nv_cvt_pk_bf16_f32 v{E+8+i}, v{O+2*i}, v{O+2*i+1}")
        a(f"{M} {vr(DR,16)}, {vr(E,4)}, {vr(VC,4)}, 0")
        for A_, K in ((E+4, VC+4), (E+8, VS), (E+12, VS+4)):
            a(f"{M} {vr(DR,16)}, {vr(A_,4)}, {vr(K,4)}, {vr(DR,16)}")
        a(f"s_lshl_b32 s41, s{S_T}, 12\ns_sub_u32 s42, 2048, s{S_T}\ns_lshl_b32 s42, s42, 12")
        a(f"ds_bpermute_b32 v{DI}, v{VNB}, v{DR}")
        for i in range(8):
            a(f"v_cvt_pk_bf16_f32 v{Y+i}, v{DR+2*i}, v{DR+2*i+1}")
        def pair_store(R, VA, sreg):
            if y64:
                for i in range(4):
                    a(f"v_cndmask_b32 v{UR+i}, v{R+4+i}, v{R+i}, s[56:57]")
                for i in range(4):
                    a(f"v_mov_b32_dpp v{UI+i}, v{UR+i} quad_perm:[1,0,3,2] row_mask:0xf bank_mask:0xf")
                for i in range(4):
                    a(f"v_cndmask_b32 v{R+i}, v{R+i}, v{UI+i}, s[56:57]\nv_cndmask_b32 v{R+4+i}, v{UI+i}, v{R+4+i}, s[56:57]")
                a(f"buffer_store_dwordx4 {vr(R,4)}, v{VA}, {srd(R_OUT)}, s{sreg} offen {ysc}\nbuffer_store_dwordx4 {vr(R+4,4)}, v{VA+4}, {srd(R_OUT)}, s{sreg} offen {ysc}")
            else:
                a(f"buffer_store_dwordx4 {vr(R,4)}, v{VA}, {srd(R_OUT)}, s{sreg} offen {ysc}\nbuffer_store_dwordx4 {vr(R+4,4)}, v{VA}, {srd(R_OUT)}, s{sreg} offen offset:16 {ysc}")
        if ygate: lds_wait(F_O, 256, 216, 4 * spin)
        a("s_mov_b32 s56, 0xaaaaaaaa\ns_mov_b32 s57, 0xaaaaaaaa")
        pair_store(Y, VYA, 41)
        lab2 = a.newlabel("nomir")
        a(f"s_waitcnt lgkmcnt(0)\ns_cmp_lg_u32 s{S_REAL}, 0\ns_cbranch_scc1 {lab2}")
        a(f"v_cvt_pk_bf16_f32 v{O}, v{DI}, v{DR+15}")
        for i in range(1, 8):
            a(f"v_cvt_pk_bf16_f32 v{O+i}, v{DR+16-2*i}, v{DR+15-2*i}")
        pair_store(O, VYM, 42)
        a.label(lab2)

    a("s_waitcnt lgkmcnt(0)")
    if stamps: a(f"s_mov_b32 s70, s{S_STAMP}")
    smap[0] = LSLOT
    stamp(1)
    def x_tile():
        a(f"v_lshrrev_b32 v7, 5, v2\nv_lshlrev_b32 v7, 1, v7\nv_and_b32 v8, 3, v2\nv_xor_b32 v7, v7, v8\nv_lshlrev_b32 v7, 4, v7\nv_lshrrev_b32 v8, 2, v2\nv_lshl_add_u32 v{VXB}, v8, 17, v7")
        a(f"s_lshl_b32 s41, s{S_XCD}, 11\ns_lshl_b32 s42, s{S_LI}, 6\ns_add_u32 s41, s41, s42\ns_lshl_b32 s42, s{S_WAVE}, 15\ns_add_u32 s41, s41, s42\ns_lshl_b32 s43, s{S_WAVE}, 12")
        for i in range(4):
            emit(f"s_add_u32 m0, s43, {LDS_B+i*1024}\ns_add_u32 s42, s41, {(i & 1)*0x200000 + (i >> 1)*16384}\nbuffer_load_dwordx4 v{VXB}, {srd(R_BX)}, s42 offen {xpol} lds", "X")
    def const_reads():
        a(f"v_lshlrev_b32 v6, 4, v2\nv_add_u32 v6, {LDS_C}, v6")
        for i in range(15):
            a(f"ds_read_b128 {vr(VH+4*i, 4)}, v6 offset:{i*1024}")
        a(f"v_lshlrev_b32 v7, 1, v5\nv_xor_b32 v7, v7, v4\nv_lshlrev_b32 v7, 4, v7\nv_lshl_add_u32 v7, v3, 11, v7\ns_lshl_b32 s41, s{S_CT2}, 7\nv_add_u32 v{VWO}, s41, v7")
    stream = [op for g in range(16) for op in dma_group(g)]
    def cut(j):
        k = ks[j] if j < len(ks) else 0
        p = 11 * (j + 1) + (k + 1 + (k > 10) if k else 0)
        return min(p, len(stream))
    wo_list = [42 + 4*i for i in range(21)] + [126] + [4*i for i in range(10)] + [40]
    def wo_run(lo, hi_):
        for i in range(lo, hi_):
            n_ = wo_list[i]
            if n_ in (42, 0): wo_start(n_)
            if n_ in (126, 40):
                lab = a.newlabel("wox")
                a(f"s_cmp_ge_u32 s{S_WAVE}, 2\ns_cbranch_scc1 {lab}")
                a("\n".join(wo_op(n_)[:2]))
                a.label(lab)
            else: weave([wo_op(n_)], [])
    pos = 0
    if js is None: js = jb + 1
    assert jx + nxg + 1 < jb or (jx + nxg + 1 == jb and ks[jx + nxg - 1] < 10)
    jrow = 2 if jb > 3 else jb + 2
    jg = 3 if jb > 5 else jb + 2
    for j in range(16):
        fill = capture(b1_consts) if j == 0 else capture(const_reads) if j == 1 else capture(b2_row_setup) if j == jrow else []
        if not nob and j == jb: fill = capture(b1_compute)
        if not nob and j == jb + 1: fill = capture(b1_finish)
        if fill and jb <= j <= jb + 1 and tprio: a(f"s_setprio {tprio}")
        if j == 15:
            if vpos == 1 and not nob:
                poll4(VF_LOAD, wait_for("P"))
                emit("\n".join("\n".join(g) for g in capture(b2_load)))
            wo_run(0, nw15)
        if not nob and max(js + 3, jg + 3) <= j < js + nsg + 3:
            lab = a.newlabel("novf")
            first = j == max(js + 3, jg + 3)
            a(f"s_lshl_b32 s41, s{S_WAVE}, 4\ns_add_u32 s41, s41, s57\n" + (f"s_cmp_gt_u32 s41, {j - js - 3}" if first else f"s_cmp_lg_u32 s41, {j - js - 3}") + f"\ns_cbranch_scc1 {lab}")
            a(f"s_lshr_b32 s41, s2, 3\ns_lshl_b32 s41, s41, 7\ns_and_b32 s42, s2, 7\ns_lshl_b32 s42, s42, 2\ns_add_u32 s41, s41, s42\ns_add_u32 s41, s41, {WS_G}")
            a(f"v_mov_b32 v6, 0\nv_mov_b32 v7, 1\ns_mov_b64 exec, 1\nbuffer_store_dword v7, v6, {srd(R_WS)}, s41 offen sc1\ns_mov_b64 exec, -1")
            a.label(lab)
        ops = stream[pos:cut(j)]; pos = cut(j)
        if j == 0:
            weave(ops[:n0], []); weave(ops[n0:], fill)
        else: weave(ops, fill)
        if fill and jb <= j <= jb + 1 and tprio: a("s_setprio 0")
        if jx <= j < jx + nxg:
            lab = a.newlabel("nox"); keep = list(q)
            a(f"s_and_b32 s41, s{S_LI}, {nxg - 1}\ns_cmp_lg_u32 s41, {j - jx}\ns_cbranch_scc1 {lab}")
            if not nob: x_tile()
            a.label(lab); q[:] = keep
        if not nob and js <= j < js + nsg:
            lab = a.newlabel("nos"); keep = list(q)
            a(f"s_cmp_lg_u32 s57, {j - js}\ns_cbranch_scc1 {lab}")
            b1_store((0, 1, 2, 3))
            a.label(lab); q[:] = keep
        if j == jg: emit(f"v_mov_b32 v9, 0\n{GO_LOAD}")
        if j == jg + 2: poll4(GO_LOAD, wait_for("G"))
        if j == 13 and vpos == 1 and not nob:
            emit(f"v_lshrrev_b32 v9, 1, v2\nv_lshlrev_b32 v9, 7, v9\nv_and_b32 v7, 1, v2\nv_lshl_add_u32 v9, v7, 4, v9\nv_add_u32 v9, {WS_G}, v9\n{VF_LOAD}")
        w = wait_for(f"D{j}")
        a(f"s_waitcnt vmcnt({w})" + (" lgkmcnt(0)" if j == jb - 1 else "") + "\ns_barrier")
        stamp(2 + j)
    wo_run(nw15, nwa)
    lab = a.newlabel("exw")
    a(f"v_mov_b32 v216, {F_EX}\nv_lshrrev_b32 v9, 1, v2\nv_lshlrev_b32 v9, 7, v9\nv_and_b32 v7, 1, v2\nv_lshl_add_u32 v9, v7, 4, v9\nv_add_u32 v9, {WS_G}, v9")
    a.label(lab)
    a(f"ds_read_b128 v[220:223], v216\ns_waitcnt lgkmcnt(0)\nv_and_b32 v220, v220, v221\nv_and_b32 v222, v222, v223\nv_and_b32 v220, v220, v222\nv_readfirstlane_b32 s40, v220\ns_cmp_eq_u32 s40, 0\ns_cbranch_scc1 {lab}")
    stamp(18)
    if not nob and vpos != 1: a(VF_LOAD)
    wo_run(nwa, len(wo_list))
    if not nob and vpos == 1:
        a("s_waitcnt vmcnt(0)")
        lds_add(F_W, 216)
        stamp(19)
        lds_wait(F_M, 256, 216, 1)
        b2_radix8(); b2_zwrite()
        lds_add(F_Z, 216)
    elif not nob:
        lat = a.newlabel("vlate"); join = a.newlabel("vjoin"); oth = a.newlabel("voth")
        a(f"s_waitcnt vmcnt({len(wo_list) - nwa - (2 if nwa <= 21 else 1)})\nv_and_b32 v128, v124, v125\nv_and_b32 v129, v126, v127\nv_and_b32 v128, v128, v129\nv_cmp_ne_u32 vcc, 1, v128\ns_cmp_eq_u64 vcc, 0\ns_cbranch_scc0 {lat}")
        lds_add(F_R, 216)
        if vpos >= 2:
            a("s_waitcnt vmcnt(0)")
            lds_add(F_W, 216)
            lds_wait(F_M if vpos == 2 else F_S, 256 if vpos == 2 else 64, 216, 1)
            b2_load()
        else:
            b2_load()
            a("s_waitcnt vmcnt(8)")
            lds_add(F_W, 216)
        a(f"s_branch {join}")
        a.label(lat)
        a("s_waitcnt vmcnt(0)")
        lds_add(F_W, 216)
        a(f"s_cmp_lg_u32 s{S_WAVE}, 0\ns_cbranch_scc1 {oth}")
        poll4(VF_LOAD, 0)
        lds_add(F_R, 216)
        a.label(oth)
        lds_wait(F_R, 64, 216)
        b2_load()
        a.label(join)
        stamp(19)
        a("s_waitcnt vmcnt(0)")
        b2_radix8(); b2_zwrite()
        lds_add(F_Z, 216)
    if nob:
        a("s_waitcnt vmcnt(0)")
        lds_add(F_W, 216)
        stamp(19)
        a("s_branch L_ldone")
    lds_wait(F_Z, 256, 216)
    a.label("L_row")
    b2_row()
    a(f"s_cmp_lg_u32 s{S_PASS}, 0\ns_cbranch_scc1 L_ldone")
    stamp(20)
    a(f"s_cmp_eq_u32 s{S_REAL}, 0\ns_cbranch_scc1 L_ldone")
    a(f"s_mov_b32 s{S_PASS}, 1\ns_movk_i32 s{S_T}, 1024\nv_add_u32 v{VZA}, 2048, v{VZA}\ns_branch L_row")
    a.label("L_ldone")
    dump_stamps(0, 21, S_WAVE, 120)
    smap[0] = None
    a("s_endpgm")

    a.label("L_compute")
    ACC, FA, FB, AX, AH, AW = 0, 104, 148, 192, 198, 204
    LN, L16, SELA, SELB = 210, 211, 212, 213
    T = 214
    a(f"v_mov_b32 v{LN}, v2\nv_lshlrev_b32 v{L16}, 4, v2")
    if codepf:
        a(f"s_getpc_b64 s[50:51]\ns_and_b32 s50, s50, 0xffffff00\ns_sub_u32 s50, s50, CODE_BASE_OFF\ns_subb_u32 s51, s51, 0")
        a(f"s_lshl_b32 s41, s{S_LI}, 2\ns_add_u32 s41, s41, s{S_WAVE}\ns_lshl_b32 s41, s41, 8\ns_min_u32 s41, s41, CODE_LAST\nv_and_b32 v3, 1, v2\nv_lshlrev_b32 v3, 7, v3\nv_add_u32 v3, s41, v3")
        a(f"global_load_dword v{T+12}, v3, s[50:51]")
    a(f"v_and_b32 v44, 15, v2\nv_lshlrev_b32 v44, 2, v44\nv_add_u32 v44, {LF}, v44\nv_mov_b32 v45, 0\nds_write_b32 v44, v45")
    a("s_waitcnt lgkmcnt(0)")
    if c3:
        if c3o:
            a(f"s_and_b32 s41, s{S_XCD}, 2\ns_xor_b32 s41, s41, 2\ns_or_b32 s41, s41, s{S_WAVE}\ns_cmp_lg_u32 s41, 0\ns_cbranch_scc1 L_noc3\ns_cmp_ge_u32 s{S_LI}, 24\ns_cbranch_scc1 L_noc3")
            a(f"s_and_b32 s41, s{S_XCD}, 1\ns_lshl_b32 s41, s41, 1\ns_lshr_b32 s42, s{S_XCD}, 1\ns_sub_u32 s42, s42, 1\ns_add_u32 s41, s41, s42\ns_and_b32 s41, s41, 3\ns_mul_i32 s41, s41, 768")
        else:
            a(f"s_and_b32 s41, s{S_XCD}, 2\ns_or_b32 s41, s41, s{S_WAVE}\ns_cmp_lg_u32 s41, 0\ns_cbranch_scc1 L_noc3\ns_cmp_ge_u32 s{S_LI}, 24\ns_cbranch_scc1 L_noc3")
            a(f"s_and_b32 s41, s{S_XCD}, 1\ns_lshl_b32 s41, s41, 1\ns_lshr_b32 s42, s{S_XCD}, 1\ns_add_u32 s41, s41, s42\ns_and_b32 s41, s41, 3")
            if rotk == 2: a(f"s_and_b32 s41, s{S_XCD}, 1\ns_lshl_b32 s41, s41, 1")
            if rotk == 1: a("s_mov_b32 s41, 0")
            a("s_mul_i32 s41, s41, 768")
        a(f"s_lshl_b32 s43, s{S_LI}, 6\ns_add_u32 s41, s41, s43\nv_add_u32 v3, s41, v2\nv_subrev_u32 v4, 3072, v3\nv_min_u32 v3, v3, v4\nv_lshlrev_b32 v3, 11, v3")
        a(f"s_lshl_b32 s42, s42, 9\ns_add_u32 s42, s42, 384\nbuffer_load_dword v{T+13}, v3, {srd(R_W)}, s42 offen")
        if c3n == 2:
            a(f"v_add_u32 v4, 0x300000, v3\nv_subrev_u32 v5, 0x300000, v3\nv_cmp_gt_u32 vcc, 0x300000, v3\nv_cndmask_b32 v3, v5, v4, vcc\nbuffer_load_dword v{T+13}, v3, {srd(R_W)}, s42 offen")
        a.label("L_noc3")
    a(f"s_cmp_lg_u32 s2, 0\ns_cbranch_scc1 L_nozero")
    a(f"v_mov_b32 v4, 0\nv_mov_b32 v5, 0\nv_mov_b32 v6, 0\nv_mov_b32 v7, 0\nv_lshlrev_b32 v3, 7, v2\ns_lshl_b32 s41, s{S_WAVE}, 13\ns_add_u32 s41, s41, {WS_F}")
    a(f"buffer_store_dwordx4 v[4:7], v3, {srd(R_WS)}, s41 offen sc1")
    a(f"v_lshrrev_b32 v3, 1, v2\nv_lshlrev_b32 v3, 7, v3\nv_and_b32 v8, 1, v2\nv_lshl_add_u32 v3, v8, 4, v3\ns_mov_b32 s41, {WS_G}")
    a(f"buffer_store_dwordx4 v[4:7], v3, {srd(R_WS)}, s41 offen sc1\ns_nop 1")
    a.label("L_nozero")
    a(f"v_and_b32 v3, 4, v2\nv_lshlrev_b32 v3, 2, v3\nv_lshrrev_b32 v4, 1, v2\nv_and_b32 v4, 12, v4\nv_and_b32 v5, 3, v2\nv_or_b32 v3, v3, v4\nv_or_b32 v3, v3, v5")
    a(f"s_mov_b32 s41, {f32(1/32)}\ns_cmp_ge_u32 s{S_WAVE}, 2\ns_cselect_b32 s41, {f32(1/1024)}, s41\ns_and_b32 s42, s{S_WAVE}, 1\ns_cselect_b32 s42, {f32(-0.25)}, 0")
    a(f"v_cvt_f32_u32 v3, v3\nv_mul_f32 v3, s41, v3\nv_lshrrev_b32 v4, 5, v2\nv_lshlrev_b32 v4, 2, v4\nv_cvt_f32_u32 v4, v4\nv_mov_b32 v5, s42\nv_fma_f32 v4, v3, v4, v5")
    for i in range(16):
        a(f"v_fmamk_f32 v{8+i}, v3, {f32(8*(i >> 2) + (i & 3))}, v4")
    for i in range(16):
        a(f"v_cos_f32 v{8+i}, v{8+i}")
    a(f"v_add_u32 v6, {LDS_C}, v{L16}\ns_cmp_ge_u32 s{S_WAVE}, 2\ns_cbranch_scc1 L_tw")
    for i in range(8):
        a(f"v_cvt_pk_bf16_f32 v{24+i}, v{8+2*i}, v{9+2*i}")
    a(f"s_cmp_eq_u32 s{S_WAVE}, 0\ns_cbranch_scc1 L_cc")
    for i in range(8):
        a(f"v_xor_b32 v{32+i}, 0x80008000, v{24+i}")
    a(f"ds_write_b128 v6, v[24:27] offset:3072\nds_write_b128 v6, v[28:31] offset:4096\nds_write_b128 v6, v[32:35] offset:5120\nds_write_b128 v6, v[36:39] offset:6144\ns_branch L_cdone")
    a.label("L_cc")
    a(f"ds_write_b128 v6, v[24:27] offset:1024\nds_write_b128 v6, v[28:31] offset:2048")
    a(f"v_bfe_u32 v8, v2, 1, 2\nv_and_b32 v9, 1, v2\ns_and_b32 s41, s{S_LI}, 1\ns_lshl_b32 s42, s41, 2\nv_add_u32 v10, s42, v8\nv_cvt_f32_u32 v10, v10\nv_mul_f32 v10, {f32(0.125)}, v10")
    a(f"v_cvt_f32_u32 v11, v9\nv_mul_f32 v11, {f32(0.25)}, v11\nv_add_f32 v12, {f32(-0.25)}, v11")
    a(f"v_lshrrev_b32 v13, 5, v2\nv_bfe_u32 v14, v2, 3, 1\nv_cmp_eq_u32 vcc, v13, v14\nv_cndmask_b32 v13, 0, 1.0, vcc\nv_mov_b32 v14, v13")
    a(f"s_lshl_b32 s42, s{S_XCD}, 4\ns_add_u32 s42, s42, s{S_SL}\ns_cmp_lg_u32 s42, 0\ns_cbranch_scc1 L_hgen")
    a(f"s_cmp_eq_u32 s41, 0\ns_cbranch_scc0 L_h1")
    a(f"v_mov_b32 v14, 0\nv_and_b32 v15, 7, v2\nv_cmp_eq_u32 vcc, 1, v15\nv_cndmask_b32 v10, v10, 0.5, vcc\nv_cndmask_b32 v11, v11, 0, vcc\ns_branch L_hgen")
    a.label("L_h1")
    a(f"v_mov_b32 v13, 0\nv_mov_b32 v12, v11\nv_lshl_add_u32 v15, v8, 1, 1\nv_cvt_f32_u32 v10, v15\nv_mul_f32 v10, {f32(1/16)}, v10")
    a.label("L_hgen")
    a(f"v_bfe_u32 v15, v2, 4, 1\nv_lshlrev_b32 v15, 2, v15\nv_cvt_f32_u32 v15, v15\nv_fmac_f32 v11, v10, v15\nv_fmac_f32 v12, v10, v15")
    for i in range(4):
        a(f"v_cos_f32 v16, v11\nv_cos_f32 v17, v12\nv_add_f32 v11, v11, v10\nv_add_f32 v12, v12, v10\nv_mul_f32 v16, v16, v13\nv_mul_f32 v17, v17, v14\nv_cvt_pk_bf16_f32 v{24+32+i - 32 + 16}, v16, v17")
    a("ds_write_b128 v6, v[40:43]\ns_branch L_cdone")
    a.label("L_tw")
    a(f"s_sub_u32 s41, s{S_WAVE}, 2\ns_lshl_b32 s41, s41, 12\nv_add_u32 v6, s41, v6")
    for i in range(4):
        a(f"ds_write_b128 v6, {vr(8+4*i, 4)} offset:{7168+i*1024}")
    a.label("L_cdone")
    a(f"v_and_b32 v{T}, 15, v{LN}\nv_lshrrev_b32 v{T+1}, 4, v{LN}")
    a(f"v_lshrrev_b32 v{T+2}, 1, v{T}\nv_xor_b32 v{T+2}, v{T+2}, v{T+1}\nv_lshlrev_b32 v{T+2}, 4, v{T+2}\nv_lshl_add_u32 v{T+2}, v{T}, 7, v{T+2}\nv_xor_b32 v{T+3}, 64, v{T+2}")
    a(f"s_lshr_b32 s41, s{S_WAVE}, 1\ns_lshl_b32 s41, s41, 13\ns_add_u32 s41, s41, 2048")
    for sl in range(3):
        for kk in range(2):
            a(f"v_add_u32 v{AH+2*sl+kk}, {XB+sl*SLOT}, v{T+2+kk}\nv_add_u32 v{AX+2*sl+kk}, s41, v{AH+2*sl+kk}")
    a(f"v_lshrrev_b32 v{T+4}, 2, v{T}\nv_and_b32 v{T+5}, 3, v{T}")
    a(f"v_lshl_add_u32 v{T+6}, v{T+1}, 3, v{T+4}\nv_lshlrev_b32 v{T+6}, 7, v{T+6}")
    a(f"v_lshrrev_b32 v{T+7}, 1, v{T+4}\nv_and_b32 v{T+8}, 1, v{T+1}\nv_lshl_add_u32 v{T+7}, v{T+8}, 1, v{T+7}\nv_lshlrev_b32 v{T+7}, 1, v{T+7}")
    a(f"s_and_b32 s41, s{S_WAVE}, 1\ns_lshl_b32 s41, s41, 2\nv_lshrrev_b32 v{T+8}, 1, v{T+5}\nv_add_u32 v{T+9}, s41, v{T+8}")
    a(f"v_xor_b32 v{T+9}, v{T+9}, v{T+7}\nv_lshl_add_u32 v{T+6}, v{T+9}, 4, v{T+6}")
    a(f"v_and_b32 v{T+5}, 1, v{T+5}\nv_lshl_add_u32 v{T+6}, v{T+5}, 3, v{T+6}\nv_xor_b32 v{T+9}, 32, v{T+6}")
    for sl in range(3):
        a(f"v_add_u32 v{AW+2*sl}, {WB+sl*SLOT}, v{T+6}\nv_add_u32 v{AW+2*sl+1}, {WB+sl*SLOT}, v{T+9}")
    AWO = 244
    a(f"v_lshl_add_u32 v{T+6}, v{T+1}, 2, v{T+4}\nv_lshlrev_b32 v{T+6}, 7, v{T+6}\nv_lshl_add_u32 v{T+6}, v{T+5}, 3, v{T+6}")
    a(f"v_xor_b32 v{T+8}, v{T+8}, v{T+7}\nv_lshl_add_u32 v{AWO}, v{T+8}, 4, v{T+6}")
    for nb in range(1, 4):
        a(f"v_xor_b32 v{AWO+nb}, {32*nb}, v{AWO}")
    M_PAR = 56
    CM, CM0 = 228, 236
    a(f"s_mov_b32 s{M_PAR}, 0xaaaaaaaa\ns_mov_b32 s{M_PAR+1}, 0xaaaaaaaa\nv_mov_b32 v{T+4}, {f32(-1e9 if mimic else -1e30)}")
    a(f"v_lshlrev_b32 v{T+2}, 2, v{T+1}\nv_sub_u32 v{T+2}, v{T}, v{T+2}")
    for j in range(8):
        a(f"v_add_u32 v{T+3}, {(16 if j < 4 else 0) - (j & 3)}, v{T+2}\nv_and_b32 v{T+3}, 0xfffffff1, v{T+3}\nv_cmp_eq_u32 vcc, 0, v{T+3}\nv_cndmask_b32 v{CM+j}, v{T+4}, 0, vcc")
    a(f"s_lshr_b32 s41, s{S_WAVE}, 1\ns_or_b32 s41, s41, s{S_RB}\ns_cmp_eq_u32 s41, 0\ns_cselect_b64 vcc, -1, 0")
    for j in range(4):
        a(f"v_cndmask_b32 v{CM0+j}, v{CM+j}, v{T+4}, vcc")
    a(f"v_mov_b32 v{T+2}, 0x0c0c0100\nv_mov_b32 v{T+3}, 0x01000c0c\nv_cndmask_b32 v{SELA}, v{T+2}, v{T+3}, s[{M_PAR}:{M_PAR+1}]")
    a(f"v_mov_b32 v{T+2}, 0x0c0c0302\nv_mov_b32 v{T+3}, 0x03020c0c\nv_cndmask_b32 v{SELB}, v{T+2}, v{T+3}, s[{M_PAR}:{M_PAR+1}]")
    a("s_waitcnt lgkmcnt(0)")
    for i in range(104): a(f"v_mov_b32 v{ACC+i}, 0")
    a(f"s_cmp_lg_u32 s2, 0\ns_cbranch_scc1 L_nogo\nv_mov_b32 v{T+10}, 1\nv_mov_b32 v{T+11}, 0\ns_lshl_b32 s41, s{S_WAVE}, 2\ns_waitcnt vmcnt(0)")
    a(f"s_mov_b64 exec, 1\nbuffer_store_dword v{T+10}, v{T+11}, {srd(S_DBG)}, s41 offen sc1\ns_mov_b64 exec, -1")
    a.label("L_nogo")
    a(f"v_mov_b32 v{T+10}, 1\nv_mov_b32 v{T+11}, {LF}\ns_waitcnt lgkmcnt(0)")
    if prio: a("s_setprio 1")

    def reads(F, sl, kk):
        r = [f"ds_read_b64_tr_b16 {vr(F+20+8*sg+4*b+2*u, 2)}, v{AW+2*sl+b} offset:{sg*8192+kk*4096+u*512}" for sg in range(3) for b in range(2) for u in range(2)]
        x = [f"ds_read_b128 {vr(F+4*i, 4)}, v{AX+2*sl+kk} offset:{i*2048}" for i in range(4)]
        x.append(f"ds_read_b128 {vr(F+16, 4)}, v{AH+2*sl+kk}")
        return x[:1] + r[:4] + x[1:2] + r[4:8] + x[2:3] + r[8:] + x[3:]
    def mf(acc, xf, wf, transposed):
        return f"v_mfma_f32_16x16x32_bf16 {acc}, {wf}, {xf}, {acc}" if transposed else f"v_mfma_f32_16x16x32_bf16 {acc}, {xf}, {wf}, {acc}"
    def mfmas(F, rh):
        m = [mf(vr(ACC+96+4*b, 4), vr(F+16, 4), vr(F+20+4*(2+2*rh+b), 4), rh == 0) for b in range(2)]
        for i in (3, 2, 1, 0):
            for nb in (range(6) if i % 2 == 0 else range(5, -1, -1)):
                m.append(mf(vr(ACC+4*(6*i+nb), 4), vr(F+4*i, 4), vr(F+20+4*nb, 4), nb < 4))
        return m
    def step(F, rh, rd, bar, drain=False):
        m = mfmas(F, rh)
        a("s_waitcnt vmcnt(0) lgkmcnt(0)" if drain else "s_waitcnt lgkmcnt(0)")
        if bar:
            a(m[0]); a(m[1]); a("s_barrier" if bar is True else bar); m = m[2:]
        for i in range(len(m)):
            if i < len(rd) and bar: a(rd[i])
            a(m[i])
            if i < len(rd) and not bar: a(rd[i])
    KF, QF, VP, SS = 104, 124, 140, 160
    def cvt4(dst, src):
        a(f"v_cvt_pk_bf16_f32 v{dst}, v{src}, v{src+1}\nv_cvt_pk_bf16_f32 v{dst+1}, v{src+2}, v{src+3}")
    def cvt_k(i):
        cvt4(KF+4*(i+1), ACC+4*(6*i+2)); cvt4(KF+4*(i+1)+2, ACC+4*(6*i+3))
    def cvt_q(i):
        cvt4(QF+4*i, ACC+4*(6*i)); cvt4(QF+4*i+2, ACC+4*(6*i+1))
    def cvt_v(i):
        cvt4(VP+2*(i+1), ACC+4*(6*i+4)); cvt4(VP+10+2*(i+1), ACC+4*(6*i+5))
    Lr, Tr, Mx, Sm, PP, OO = 0, 16, 32, 40, 48, 64
    BL = (3, 2, 1, 0)
    LOG2E = 1.4426950408889634
    def sel_round(bl):
        if 3 in bl:
            a(f"s_mov_b32 s41, {f32(32 ** -0.5)}\ns_mov_b32 s42, {f32(LOG2E if mimic else LOG2E * 32 ** -0.5)}\ns_mov_b32 s43, 0xffff0000")
        for i in bl:
            for t in range(4):
                a(f"v_max_f32 v{Lr+4*i+t}, v{SS+8*i+2*t}, v{SS+8*i+2*t+1}")
        def round_bf16():
            for i in bl:
                for h in range(2):
                    a(f"v_cvt_pk_bf16_f32 v{Tr+2*i+h}, v{Lr+4*i+2*h}, v{Lr+4*i+2*h+1}")
            for i in bl:
                for h in range(2):
                    a(f"v_lshlrev_b32 v{Lr+4*i+2*h}, 16, v{Tr+2*i+h}\nv_and_b32 v{Lr+4*i+2*h+1}, s43, v{Tr+2*i+h}")
        if mimic:
            round_bf16()
            for i in bl:
                for t in (0, 2):
                    a(f"v_pk_mul_f32 {vr(Lr+4*i+t, 2)}, {vr(Lr+4*i+t, 2)}, s[40:41] op_sel:[0,1] op_sel_hi:[1,1]")
            round_bf16()
    def qk(i, cur):
        return f"v_mfma_f32_16x16x32_bf16 {vr(SS+8*i+4*cur, 4)}, {vr(KF+4*(i+cur), 4)}, {vr(QF+4*i, 4)}, {vr(CM+4 if cur else CM0 if i == 0 else CM, 4)}"
    EXA, EXB, EXF = T, T+1, T+9
    a(f"s_and_b32 s41, s{S_WAVE}, 1\ns_lshl_b32 s41, s41, 3\ns_add_u32 s41, s41, {F_EX}\nv_mov_b32 v{EXF}, s41")
    a(f"s_and_b32 s41, s{S_WAVE}, 1\ns_lshl_b32 s41, s41, 12\ns_add_u32 s41, s41, {LDS_C}\nv_add_u32 v{EXA}, s41, v{L16}\nv_lshlrev_b32 v{EXB}, 3, v{LN}\nv_add_u32 v{EXB}, s41, v{EXB}")
    a(f"s_cmp_ge_u32 s{S_WAVE}, 2\ns_cbranch_scc1 L_c1")
    for rh in range(2):
        if rh == 1: a.label("L_c1")
        a("s_barrier")
        if dbgst: a("s_memrealtime s[100:101]")
        stamp(1)
        for r in reads(FA, 0, 0): a(r)
        a("s_mov_b32 s40, 5")
        a.label(f"L_cl{rh}")
        for sl in range(3):
            step(FA, rh, reads(FB, sl, 1), False)
            step(FB, rh, reads(FA, (sl+1) % 3, 0), True)
        a(f"s_sub_u32 s40, s40, 1\ns_cmp_lg_u32 s40, 0\ns_cbranch_scc1 L_cl{rh}")
        step(FA, rh, reads(FB, 0, 1), False)
        step(FB, rh, [], False)
        stamp(2)
        cvt4(KF, ACC+96); cvt4(KF+2, ACC+100)
        if rh == 0:
            exwr = f"ds_write_b128 v{EXA}, {vr(KF+16, 4)}\nds_write_b64 v{EXB}, {vr(VP+8, 2)} offset:1024\nds_write_b64 v{EXB}, {vr(VP+18, 2)} offset:1536\nds_write_b32 v{EXF}, v{T+10}"
            cvt_k(3); cvt_v(3)
            if not exw: a(exwr)
        else:
            exwr = f"ds_write_b64 v{EXB}, {vr(KF, 2)} offset:2048\nds_write_b64 v{EXB}, {vr(KF+2, 2)} offset:2560\nds_write_b32 v{EXF}, v{T+10} offset:4"
            if not exw: a(exwr)
            cvt_k(3); cvt_v(3)
        cvt_q(3)
        if att2:
            for i in (2, 1, 0):
                cvt_k(i)
                a(qk(i + 1, 1)); a(qk(i + 1, 0))
                cvt_q(i)
            a(qk(0, 1))
            for i in (2, 1, 0): cvt_v(i)
        else:
            for i in (2, 1, 0):
                cvt_k(i); cvt_q(i); cvt_v(i)
        if exw: a(exwr)
        stamp(8)
        if exlate:
            sel_round((3, 2, 1))
        lab = a.newlabel("ex")
        a.label(lab)
        a(f"ds_read_b32 v{T+2}, v{EXF} offset:{4 - 4*rh}\ns_waitcnt lgkmcnt(0)\nv_readfirstlane_b32 s44, v{T+2}\ns_cmp_eq_u32 s44, 0\ns_cbranch_scc1 {lab}")
        if rh == 0:
            a(f"ds_read_b64 {vr(VP, 2)}, v{EXB} offset:2048\nds_read_b64 {vr(VP+10, 2)}, v{EXB} offset:2560\ns_branch L_attn")
        else:
            a(f"ds_read_b128 {vr(KF, 4)}, v{EXA}\nds_read_b64 {vr(VP, 2)}, v{EXB} offset:1024\nds_read_b64 {vr(VP+10, 2)}, v{EXB} offset:1536")
    a.label("L_attn")
    if att2:
        a("s_waitcnt lgkmcnt(0)"); a(qk(0, 0))
    else:
        for i in (3, 2, 1, 0):
            if i == 0: a("s_waitcnt lgkmcnt(0)")
            a(qk(i, 1)); a(qk(i, 0))
    stamp(9)
    sel_round((0,) if exlate else BL)
    def allreduce(R, op, post):
        a(f"v_permlane32_swap_b32 v{R}, v{R+1}\nv_permlane32_swap_b32 v{R+2}, v{R+3}")
        a(f"{op} v{R}, v{R}, v{R+1}\n{op} v{R+2}, v{R+2}, v{R+3}")
        a(f"v_permlane16_swap_b32 v{R}, v{R+2}\n{op} v{R}, v{R}, v{R+2}")
        a(post.format(r=R))
        a(f"v_mov_b32 v{R+2}, v{R}\nv_permlane16_swap_b32 v{R}, v{R+2}\nv_mov_b32 v{R+1}, v{R}\nv_mov_b32 v{R+3}, v{R+2}")
        a(f"v_permlane32_swap_b32 v{R}, v{R+1}\nv_permlane32_swap_b32 v{R+2}, v{R+3}")
    for i in BL: a(f"v_max_f32 v{Mx+i}, v{Lr+4*i}, v{Lr+4*i+1}")
    for i in BL: a(f"v_max3_f32 v{Mx+i}, v{Mx+i}, v{Lr+4*i+2}, v{Lr+4*i+3}")
    allreduce(Mx, "v_max_f32", "v_mul_f32 v{r}, s42, v{r}")
    stamp(10)
    for i in BL:
        if pk:
            for t in (0, 2):
                a(f"v_pk_fma_f32 {vr(Lr+4*i+t, 2)}, {vr(Lr+4*i+t, 2)}, s[42:43], {vr(Mx+(i & ~1), 2)} op_sel:[0,0,{i & 1}] op_sel_hi:[1,0,{i & 1}] neg_lo:[0,0,1] neg_hi:[0,0,1]")
        else:
            for t in range(4):
                a(f"v_fma_f32 v{Lr+4*i+t}, v{Lr+4*i+t}, s42, -v{Mx+i}")
    for i in BL:
        for t in range(4):
            a(f"v_exp_f32 v{Lr+4*i+t}, v{Lr+4*i+t}")
    if pk:
        for i in BL: a(f"v_pk_add_f32 {vr(Tr+2*i, 2)}, {vr(Lr+4*i, 2)}, {vr(Lr+4*i+2, 2)}")
        for i in BL: a(f"v_add_f32 v{Sm+i}, v{Tr+2*i}, v{Tr+2*i+1}")
    else:
        for i in BL: a(f"v_add_f32 v{Sm+i}, v{Lr+4*i}, v{Lr+4*i+1}\nv_add_f32 v{Tr+i}, v{Lr+4*i+2}, v{Lr+4*i+3}")
        for i in BL: a(f"v_add_f32 v{Sm+i}, v{Sm+i}, v{Tr+i}")
    allreduce(Sm, "v_add_f32", "v_rcp_f32 v{r}, v{r}")
    for i in BL:
        if pk:
            for t in (0, 2):
                a(f"v_pk_mul_f32 {vr(Lr+4*i+t, 2)}, {vr(Lr+4*i+t, 2)}, {vr(Sm+(i & ~1), 2)} op_sel:[0,{i & 1}] op_sel_hi:[1,{i & 1}]")
        else:
            for t in range(4):
                a(f"v_mul_f32 v{Lr+4*i+t}, v{Lr+4*i+t}, v{Sm+i}")
    for i in BL:
        for h in range(2):
            a(f"v_cvt_pk_bf16_f32 v{Tr+2*i+h}, v{Lr+4*i+2*h}, v{Lr+4*i+2*h+1}")
    for i in BL:
        for h in range(2):
            a(f"v_perm_b32 v{PP+4*i+2*h}, v{Tr+2*i+h}, v{Tr+2*i+h}, v{SELA}\nv_perm_b32 v{PP+4*i+2*h+1}, v{Tr+2*i+h}, v{Tr+2*i+h}, v{SELB}")
    for i in BL:
        for b in range(2):
            a(f"v_mfma_f32_16x16x32_bf16 {vr(OO+8*i+4*b, 4)}, {vr(VP+10*b+2*i, 4)}, {vr(PP+4*i, 4)}, 0")
    stamp(11)
    a(f"s_lshl_b32 s41, s{S_RB}, 3\ns_lshr_b32 s42, s{S_WAVE}, 1\ns_lshl_b32 s43, s42, 2\ns_add_u32 s41, s41, s43\ns_lshl_b32 s41, s41, 5")
    a(f"s_lshl_b32 s43, s{S_CT}, 1\ns_and_b32 s44, s{S_WAVE}, 1\ns_add_u32 s43, s43, s44\ns_add_u32 s41, s41, s43\ns_lshl_b32 s41, s41, 10\ns_add_u32 s41, s41, {WS_O + 3*32768}")
    for i in BL:
        cvt4(Lr+4*i, OO+8*i); cvt4(Lr+4*i+2, OO+8*i+4)
        a(f"buffer_store_dwordx4 {vr(Lr+4*i, 4)}, v{L16}, {srd(R_WS)}, s41 offen sc1")
        if i: a("s_sub_u32 s41, s41, 32768")
    if vpos == 1: a(f"ds_add_u32 v{T+11}, v{T+10} offset:{F_M-LF}")
    stamp(3)
    a(f"s_lshl_b32 s41, s{S_RB}, 4\ns_add_u32 s41, s41, s{S_CT}\ns_lshl_b32 s41, s41, 7\ns_lshl_b32 s43, s{S_WAVE}, 2\ns_add_u32 s41, s41, s43\ns_add_u32 s41, s41, {WS_F}")
    a(f"v_mov_b32 v{T+2}, 0\nv_lshrrev_b32 v{T+4}, 2, v{LN}\nv_lshlrev_b32 v{T+4}, 7, v{T+4}\nv_and_b32 v{T+7}, 3, v{LN}\nv_lshl_add_u32 v{T+4}, v{T+7}, 2, v{T+4}")
    A2, WF, OR = 0, 32, 96
    a(f"s_lshl_b32 s44, s{S_RB2}, 11\ns_add_u32 s44, s44, {WS_F}\ns_mov_b32 s47, {SPIN}")
    a(f"s_lshl_b32 s45, s{S_RB2}, 3\ns_lshl_b32 s46, s{S_WAVE}, 1\ns_add_u32 s45, s45, s46\ns_lshl_b32 s45, s45, 15\ns_add_u32 s45, s45, {WS_O}")
    a(f"v_add_u32 v{T+5}, 0x8000, v{L16}\ns_lshl_b32 s46, s{S_H0}, 10")
    POLL = f"buffer_load_dword v{T+6}, v{T+4}, {srd(R_WS)}, s44 offen sc1"
    FLAG = f"s_mov_b64 exec, 1\nbuffer_store_dword v{T+10}, v{T+2}, {srd(R_WS)}, s41 offen sc1\ns_mov_b64 exec, -1"
    if epoll:
        if noack: a(f"s_cmp_lg_u32 s{S_WAVE}, 0\ns_cbranch_scc1 L_nep\n{FLAG}\n{POLL}\n{FLAG}\ns_branch L_nef")
        else: a(f"s_cmp_lg_u32 s{S_WAVE}, 0\ns_cbranch_scc1 L_nep\n{POLL}\ns_waitcnt vmcnt(1)\n{FLAG}\ns_branch L_nef")
        a.label("L_nep")
    a(FLAG if noack else f"s_waitcnt vmcnt(0)\n{FLAG}")
    a.label("L_nef")
    if ygate == 1: a(f"ds_add_u32 v{T+11}, v{T+10} offset:{F_O-LF}")
    if vpos == 2: a(f"ds_add_u32 v{T+11}, v{T+10} offset:{F_M-LF}")
    stamp(4)
    for i in range(32): a(f"v_mov_b32 v{A2+i}, 0")
    def await_flags(test, flag, preloaded):
        oth = a.newlabel("ow"); lp = a.newlabel("op"); chk = a.newlabel("oc"); seen = a.newlabel("os"); go = a.newlabel("og")
        a(f"s_cmp_lg_u32 s{S_WAVE}, 0\ns_cbranch_scc1 {oth}")
        if preloaded: a(("s_waitcnt vmcnt(1)\n" if preloaded == 2 else "") + f"s_branch {chk}")
        a.label(lp)
        a(f"{POLL}\ns_sub_u32 s47, s47, 1\ns_waitcnt vmcnt(0)")
        a.label(chk)
        a(f"v_cmp_ne_u32 vcc, 1, v{T+6}\n{test}\ns_cbranch_scc1 {seen}" + (f"\ns_sleep {osleep}" if osleep else "") + f"\ns_cmp_gt_i32 s47, 0\ns_cbranch_scc1 {lp}")
        a.label(seen)
        a(f"ds_add_u32 v{T+11}, v{T+10} offset:{flag-LF}\ns_branch {go}")
        a.label(oth)
        lds_wait(flag, 64, T+12)
        a.label(go)
    def wo_reads(pos):
        Fr = WF + 16 * (pos % 4)
        return [f"ds_read_b64_tr_b16 {vr(Fr+4*nb+2*b, 2)}, v{AWO+nb} offset:{pos*4096+b*2048}" for nb in range(4) for b in range(2)]
    assert arr2 != "2x16"
    def o_load(p, b):
        return f"buffer_load_dwordx4 {vr(OR+8*p+4*b, 4)}, v{T+5 if b else L16}, {srd(R_WS)}, s{48 + (p >> 2)} offen offset:{(p & 3)*1024} sc1"
    def o_next(h):
        return [f"s_add_u32 s{48+h}, s45, s46", "s_add_u32 s46, s46, 4096", f"s_and_b32 s46, s46, {0x3fff if halves else 0x7fff}"]
    await_flags("s_cmp_eq_u32 vcc_lo, 0" if halves else "s_cmp_eq_u64 vcc, 0", F_S, 2 if epoll else 0)
    stamp(5)
    for p in range(8):
        if p % 4 == 0: a("\n".join(o_next(p >> 2)))
        a(o_load(p, 0))
        if p < 7: a(o_load(p, 1))
    lds_wait(F_W, 256, T+12)
    for r in wo_reads(0) + wo_reads(1): a(r)
    def g2_iter(last):
        for p in range(8):
            F = WF + 16 * (p % 4)
            rd = [] if (last and p >= 6) else wo_reads(p + 2)
            extra = [[] for _ in range(8)]
            if p > 0 and not last: extra[0].append(o_load(p - 1, 1))
            if p == 0: extra[0].append(o_load(7, 1))
            if not last:
                if p % 4 == 0:
                    for i, t in enumerate(o_next(p >> 2)): extra[1 + i].append(t)
                extra[5].append(o_load(p, 0))
            else:
                if p == 1: extra[2].append(f"v_and_b32 v{T+2}, 7, v{LN}"); extra[3].append(f"v_lshlrev_b32 v{T+2}, 12, v{T+2}")
            if last: vm = 15 - 2*p if p == 0 else 14 - 2*p
            else: vm = 13
            a(f"s_waitcnt vmcnt({13 if p == 0 else vm}) lgkmcnt({0 if (last and p == 7) else 8})")
            k = 0
            for b in range(2):
                for nb in (range(4) if b == 0 else range(3, -1, -1)):
                    acc = vr(A2+16*b+4*nb, 4)
                    a(f"v_mfma_f32_16x16x32_bf16 {acc}, {vr(F+4*nb, 4)}, {vr(OR+8*p+4*b, 4)}, {acc}")
                    if k < len(rd): a(rd[k])
                    for t in extra[k]: a(t)
                    k += 1
    a("s_mov_b32 s50, 3")
    if halves:
        a(f"s_cmp_lg_u32 s{S_WAVE}, 0\ns_cbranch_scc1 L_g2\n{POLL}")
    a.label("L_g2")
    g2_iter(False)
    for nb in range(4): a(f"v_add_u32 v{AWO+nb}, 0x8000, v{AWO+nb}")
    if halves:
        a("s_cmp_lg_u32 s50, 3\ns_cbranch_scc1 L_g2n")
        await_flags("s_cmp_eq_u32 vcc_hi, 0", F_B, True)
        a("s_add_u32 s45, s45, 0x4000")
        a.label("L_g2n")
    a("s_sub_u32 s50, s50, 1\ns_cmp_lg_u32 s50, 0\ns_cbranch_scc1 L_g2")
    if ygate == 2: a(f"ds_add_u32 v{T+11}, v{T+10} offset:{F_O-LF}")
    def out_addr():
        return [f"v_and_b32 v{T+2}, 7, v{LN}", f"v_lshlrev_b32 v{T+2}, 12, v{T+2}", f"v_bfe_u32 v{T+3}, v{LN}, 4, 1", f"v_lshl_add_u32 v{T+2}, v{T+3}, 5, v{T+2}",
                f"v_lshrrev_b32 v{T+3}, 5, v{LN}", f"v_lshl_add_u32 v{T+2}, v{T+3}, 4, v{T+2}", f"v_bfe_u32 v{T+3}, v{LN}, 3, 1", f"v_lshl_add_u32 v{T+2}, v{T+3}, 6, v{T+2}",
                f"s_lshl_b32 s41, s{S_RB2}, 2", f"s_add_u32 s41, s41, s{S_WAVE}", "s_lshl_b32 s41, s41, 17", f"s_lshl_b32 s42, s{S_CT2}, 7", "s_add_u32 s41, s41, s42"]
    def out_block(b, D, TMP):
        r = []
        for pr in range(2):
            for h in range(2):
                src = A2+16*b+8*pr+4*h
                r += [f"v_cvt_pk_bf16_f32 v{D+4*pr+2*h}, v{src}, v{src+1}", f"v_cvt_pk_bf16_f32 v{D+4*pr+2*h+1}, v{src+2}, v{src+3}"]
        for pr in range(2):
            r += [f"v_permlane16_swap_b32 v{D+4*pr}, v{D+4*pr+2}", f"v_permlane16_swap_b32 v{D+4*pr+1}, v{D+4*pr+3}"]
        r += [f"v_mov_b32 v{TMP+i}, v{D+i}" for i in range(4)]
        r += [f"v_mov_b32_dpp v{D+i}, v{D+4+i} row_ror:8 row_mask:0xf bank_mask:0xc" for i in range(4)]
        r += [f"v_mov_b32_dpp v{D+4+i}, v{TMP+i} row_ror:8 row_mask:0xf bank_mask:0x3" for i in range(4)]
        r += [f"buffer_store_dwordx4 {vr(D, 4)}, v{T+2}, {srd(R_OUT)}, s41 offen {osc}", "s_add_u32 s41, s41, 0x8000",
              f"buffer_store_dwordx4 {vr(D+4, 4)}, v{T+2}, {srd(R_OUT)}, s41 offen {osc}", "s_add_u32 s41, s41, 0x8000"]
        return r
    if not split:
        g2_iter(True)
        stamp(6)
        for t in out_addr()[2:] + out_block(0, WF, WF+16) + out_block(1, WF+8, WF+16): a(t)
    else:
        WX = 160
        def wset(p): return WX + 16 * (p - 6) if p >= 6 else WF + 16 * (p % 4)
        def wrd(p): return [f"ds_read_b64_tr_b16 {vr(wset(p)+4*nb+2*b, 2)}, v{AWO+nb} offset:{p*4096+b*2048}" for nb in range(4) for b in range(2)]
        def mm(p, b, nb):
            acc = vr(A2+16*b+4*nb, 4)
            return f"v_mfma_f32_16x16x32_bf16 {acc}, {vr(wset(p)+4*nb, 4)}, {vr(OR+8*p+4*b, 4)}, {acc}"
        for p in range(4):
            a(f"s_waitcnt vmcnt({13 if p == 0 else 14 - 2*p}) lgkmcnt({8 if p < 3 else 15})")
            k = 0
            for b in range(2):
                for nb in (range(4) if b == 0 else range(3, -1, -1)):
                    a(mm(p, b, nb)); a(wrd(p + 2)[k])
                    if p >= 2: a(wrd(p + 4)[k])
                    if p == 0 and k == 0: a(o_load(7, 1))
                    k += 1
        for p in range(4, 8):
            a(f"s_waitcnt vmcnt({15 - 2*p})" + (" lgkmcnt(15)" if p == 4 else " lgkmcnt(0)" if p == 5 else ""))
            for nb in (range(4) if p % 2 == 0 else range(3, -1, -1)): a(mm(p, 0, nb))
        a("s_waitcnt vmcnt(0)")
        fill = out_addr() + out_block(0, OR, OR+16)
        seq = [(p, nb) for p in range(4, 8) for nb in (range(4) if p % 2 == 0 else range(3, -1, -1))]
        for i, (p, nb) in enumerate(seq):
            a(mm(p, 1, nb))
            for t in fill[len(fill) * i // 15:len(fill) * (i + 1) // 15]: a(t)
        stamp(6)
        for t in out_block(1, OR+8, OR+16): a(t)
    if stamps:
        a("s_waitcnt vmcnt(0)")
        stamp(7)
    if dbgst:
        a(f"s_waitcnt vmcnt(0)\ns_memrealtime s[96:97]\ns_memtime s[98:99]\ns_waitcnt lgkmcnt(0)\ns_cmp_lg_u32 s{S_WAVE}, 0\ns_cbranch_scc1 L_end\ns_cmp_ge_u32 s2, 4\ns_cbranch_scc1 L_end")
        a(f"s_sub_u32 s96, s96, s92\ns_sub_u32 s98, s98, s94\ns_sub_u32 s100, s100, s92\ns_mov_b32 s{S_DBG+2}, 64\ns_mul_i32 s41, s2, 12\ns_add_u32 s41, s41, 16")
        a(f"v_mov_b32 v0, s96\nv_mov_b32 v1, s98\nv_mov_b32 v2, s100\nv_mov_b32 v4, 0\ns_mov_b64 exec, 1\nbuffer_store_dwordx3 v[0:2], v4, {srd(S_DBG)}, s41 offen")
    if stamps:
        a(f"s_waitcnt lgkmcnt(0)\ns_lshl_b32 s40, s2, 8\ns_lshl_b32 s41, s{S_WAVE}, 6\ns_add_u32 s40, s40, s41\ns_add_u32 s40, s40, {WS_ST + 65536}\nv_mov_b32 v{T+2}, 0")
        for i in range(12):
            a(f"v_mov_b32 v{T+3}, s{S_STAMP+2*i}\nbuffer_store_dword v{T+3}, v{T+2}, {srd(R_WS)}, s40 offen offset:{4*i}")
    dump_stamps(128, 12, S_WAVE, T+2)
    a.label("L_end")
    a("s_endpgm")
    text, added = fix(a.text())
    if codepf:
        text = text.replace("s_getpc_b64 s[50:51]", "s_getpc_b64 s[50:51]\nL_pc:")
        text = text.replace("CODE_BASE_OFF", f"((L_pc - {KNAME}) & 0xffffff00)").replace("CODE_LAST", f"((L_end - {KNAME} - 256) & 0xffffff00)")
    return text

HEADER = open("concat_heads__sliding_local_dilated__spectral_fnet__prompt.s.ref").read().split("; Override launch")[0] \
    if len(sys.argv) > 1 and sys.argv[1] == "final" else ""

VARIANTS = {
    "base": dict(prio=0), "noexw": dict(prio=0, exw=False), "rot": dict(prio=0, oprot=True, n0=8), "nwa18": dict(prio=0, nwa=18), "nomim": dict(prio=0, mimic=False),
    "split": dict(prio=0, split=True), "p1": dict(prio=1), "s5": dict(prio=0, js=4),
}
if __name__ == "__main__":
    if len(sys.argv) > 1 and sys.argv[1] == "final":
        open("concat_heads__sliding_local_dilated__spectral_fnet__prompt.s", "w").write(
            wrap(gen(**VARIANTS[sys.argv[2]]), 256, 512, LDS_TOTAL, header=HEADER))
    else:
        for nm, kw in VARIANTS.items():
            open(f"k_{nm}.s", "w").write(wrap(gen(**kw), 256, 512, LDS_TOTAL))
            open(f"k_{nm}_stamp.s", "w").write(wrap(gen(stamps=True, **kw), 256, 512, LDS_TOTAL))
```
